```python
import torch

def _softmax(x, axis=-1):
    return torch.softmax(x, dim=axis)
def _gelu(x):
    return torch.nn.functional.gelu(x, approximate="tanh")
def _silu(x):
    return torch.nn.functional.silu(x)
def _sigmoid(x):
    return torch.sigmoid(x)
def _layernorm(x, axis=-1, eps=1e-5):
    m = x.mean(dim=axis, keepdim=True)
    v = x.var(dim=axis, keepdim=True, unbiased=False)
    return (x - m) / torch.sqrt(v + eps)
def _scatter_add(tgt, idx, src, axis=0):
    return tgt.clone().index_add_(axis, idx, src)
def _segment_sum(src, seg, n):
    out = torch.zeros((n,) + src.shape[1:], dtype=src.dtype)
    return out.index_add_(0, seg, src)
def _pad(x, pw):
    flat = tuple(v for pair in reversed(pw) for v in pair)
    return torch.nn.functional.pad(x, flat)

kernel_name = 'parallel_sum__grouped_kv_mqa__moe_arch_mod__prompt'

def setup_inputs():

    _w = (lambda a: (lambda t: t.to(torch.bfloat16) if t.is_floating_point() else t)(torch.as_tensor(a)))
    def _A_setup():
        B, S, D, H = 1, 2048, 512, 32
        Dh = D // H
        return {
            "x": _w((lambda *s: torch.randn(*s, dtype=torch.bfloat16) * 0.05)(B, S, D)),
            "wq": _w((lambda *s: torch.randn(*s, dtype=torch.bfloat16) * 0.2)(D, H * Dh)),
            "wk": _w((lambda *s: torch.randn(*s, dtype=torch.bfloat16) * 0.2)(D, Dh)),
            "wv": _w((lambda *s: torch.randn(*s, dtype=torch.bfloat16) * 0.1)(D, Dh)),
            "wo": _w((lambda *s: torch.randn(*s, dtype=torch.bfloat16) * 0.1)(H * Dh, D)),
        }
    _A_in = _A_setup()

    def _B_setup():
        B, S, D, F, C = 1, 2048, 512, 1376, 2
        return {
            "x": _w((lambda *s: torch.randn(*s, dtype=torch.bfloat16) * 0.05)(B, S, D)),
            "w_r": _w((lambda *s: torch.randn(*s, dtype=torch.bfloat16) * 0.2)(D)),
            "w_gate": _w((lambda *s: torch.randn(*s, dtype=torch.bfloat16) * 0.1)(D, F)),
            "w_up": _w((lambda *s: torch.randn(*s, dtype=torch.bfloat16) * 0.1)(D, F)),
            "w_down": _w((lambda *s: torch.randn(*s, dtype=torch.bfloat16) * 0.1)(F, D)),
        }
    _B_in = _B_setup()

    return {
        "A_x": _A_in["x"],
        "A_wq": _A_in["wq"],
        "A_wk": _A_in["wk"],
        "A_wv": _A_in["wv"],
        "A_wo": _A_in["wo"],
        "B_x": _B_in["x"],
        "B_w_r": _B_in["w_r"],
        "B_w_gate": _B_in["w_gate"],
        "B_w_up": _B_in["w_up"],
        "B_w_down": _B_in["w_down"],
    }

def reference(A_x, A_wq, A_wk, A_wv, A_wo, B_x, B_w_r, B_w_gate, B_w_up, B_w_down):
    def _A_ref(x, wq, wk, wv, wo):
        B, S, D = x.shape
        H = 32
        Dh = D // H
        q = (lambda x, *d: x.permute(*d))((x @ wq).reshape(B, S, H, Dh), 0, 2, 1, 3)
        k = x @ wk
        v = x @ wv
        scores = torch.einsum("bhqd,bkd->bhqk", q, k) * (Dh ** -0.5)
        p = _softmax(scores, axis=-1)
        o = torch.einsum("bhqk,bkd->bhqd", p, v)
        return (lambda x, *d: x.permute(*d))(o, 0, 2, 1, 3).reshape(B, S, H * Dh) @ wo

    def _B_ref(x, w_r, w_gate, w_up, w_down):
        B, S, D = x.shape
        C = 2
        r = x @ w_r
        idx = torch.argsort(-r, axis=-1)[:, :C]
        idx_e = (lambda x, n, axis: torch.repeat_interleave(x, n, dim=axis))(idx.reshape(B, C, 1), D, axis=2)
        x_sel = (lambda x, i, axis: torch.take_along_dim(x, i, dim=axis))(x, idx_e, axis=1)
        g = _silu(x_sel @ w_gate)
        u = x_sel @ w_up
        y = (g * u) @ w_down
        r_sel = _sigmoid((lambda x, i, axis: torch.take_along_dim(x, i, dim=axis))(r, idx, axis=1))
        y = y * r_sel.reshape(B, C, 1)
        b_off = (torch.arange(B) * S).reshape(B, 1)
        flat_idx = (idx + b_off).reshape(B * C)
        zero = (x * 0.0).reshape(B * S, D)
        upd = _scatter_add(zero, flat_idx, y.reshape(B * C, D), axis=0)
        return x + upd.reshape(B, S, D)

    x = A_x
    xn = _layernorm(x, axis=-1)
    return x + _A_ref(xn, A_wq, A_wk, A_wv, A_wo) + _B_ref(xn, B_w_r, B_w_gate, B_w_up, B_w_down)
```

```python
XN, Q, KB, VT, R, O, YP, SEL = 0, 0x200000, 0x400000, 0x410000, 0x420000, 0x500000, 0x700000, 0x740000
WS_BYTES = 0x800000
NMOE = 43
K2_LDS = 135168
K2_VGPR = 128
def k2(L, e, lab, srd, header):
    header("attn_kernel")
    e(f"s_cmp_ge_u32 s2, {256+NMOE}"); e("s_cbranch_scc1 K2_END")
    e("s_load_dwordx2 s[14:15], s[0:1], 96")
    e("s_load_dwordx4 s[4:7], s[0:1], 56"); e("s_load_dwordx2 s[8:9], s[0:1], 72")
    e("v_and_b32 v1, 63, v0"); e("v_lshrrev_b32 v2, 6, v0"); e("s_nop 0")
    e("v_readfirstlane_b32 s22, v2")
    e("s_mov_b32 s64, 0x0000ffff"); e("s_mov_b32 s65, 0x0000ffff")
    e("s_waitcnt lgkmcnt(0)")
    srd(36, 14, 15, WS_BYTES)
    e("s_mov_b32 s20, s2"); e("s_sub_u32 s2, s2, 256"); e("s_cmp_ge_u32 s20, 256"); e("s_cbranch_scc1 K2_MOE")
    QF, KA, KBb, VA, VB, NEGM, SA, SB, P, OA, T = 4, 8, 12, 16, 24, 32, 48, 64, 80, 88, 104
    e("v_lshlrev_b32 v2, 4, v1")
    e(f"s_lshl_b32 s61, s22, 14"); e(f"s_add_u32 s60, s61, {KB}")
    for j in range(16):
        e("s_mov_b32 m0, s61"); e("s_nop 0")
        e("buffer_load_dwordx4 v2, s[36:39], s60 offen lds")
        e("s_add_u32 s60, s60, 1024"); e("s_add_u32 s61, s61, 1024")
    e("s_lshl_b32 s60, s20, 3"); e("s_add_u32 s60, s60, s22")
    e("v_and_b32 v2, 31, v1"); e("v_lshrrev_b32 v3, 5, v1")
    e("v_lshlrev_b32 v120, 5, v2"); e("v_lshl_add_u32 v120, v3, 4, v120")
    e("s_lshl_b32 s61, s60, 10"); e(f"s_add_u32 s61, s61, {Q}")
    e(f"buffer_load_dwordx4 v[{QF}:{QF+3}], v120, s[36:39], s61 offen")
    e("v_and_b32 v121, 15, v1"); e("v_lshlrev_b32 v121, 4, v121"); e("v_lshl_add_u32 v121, v3, 8, v121")
    e("v_add_u32 v121, 0x10000, v121")
    e("v_cmp_eq_u32 vcc, 16, v2"); e("v_mov_b32 v4, 0"); e("v_mov_b32 v122, 0x3f803f80"); e("s_nop 1")
    e("v_cndmask_b32 v122, 0, v122, vcc")
    for i in range(16): e(f"v_mov_b32 v{VA+i}, v122")
    for i in range(16): e(f"v_mov_b32 v{OA+i}, 0")
    for i in range(16): e(f"v_mov_b32 v{NEGM+i}, 0")
    e("s_waitcnt vmcnt(0)"); e("s_barrier")
    e(f"ds_read_b128 v[{KA}:{KA+3}], v120"); e(f"ds_read_b128 v[{KBb}:{KBb+3}], v120 offset:1024")
    e("s_mov_b64 exec, s[64:65]")
    e(f"ds_read_b128 v[{VA}:{VA+3}], v121"); e(f"ds_read_b128 v[{VA+4}:{VA+7}], v121 offset:512")
    e("s_mov_b64 exec, -1")
    e("s_waitcnt lgkmcnt(0)")
    e(f"v_mfma_f32_32x32x16_bf16 v[{SA}:{SA+15}], v[{KA}:{KA+3}], v[{QF}:{QF+3}], v[{NEGM}:{NEGM+15}]")
    e("s_nop 15"); e("s_nop 3")
    def maxtree(S, d):
        e(f"v_max3_f32 v{d}, v{S}, v{S+1}, v{S+2}")
        for i in range(3, 15, 2): e(f"v_max3_f32 v{d}, v{d}, v{S+i}, v{S+i+1}")
        e(f"v_max_f32 v{d}, v{d}, v{S+15}")
    def bothhalves(d, t):
        e(f"v_mov_b32 v{t}, v{d}"); e("s_nop 1"); e(f"v_permlane32_swap_b32 v{d}, v{t}"); e("s_nop 1")
        e(f"v_max_f32 v{d}, v{d}, v{t}")
    maxtree(SA, T); bothhalves(T, T + 1)
    for i in range(16): e(f"v_sub_f32 v{SA+i}, v{SA+i}, v{T}")
    for i in range(16): e(f"v_sub_f32 v{NEGM+i}, 0, v{T}")
    e("v_add_u32 v120, 2048, v120")
    e("v_add_u32 v121, 1024, v121")
    slow = []
    def it(tag, Sc, Sn, Kc, Kn, Vc, Vn, koff, voff, last=False):
        if not last:
            e("s_waitcnt lgkmcnt(2)")
            e(f"v_mfma_f32_32x32x16_bf16 v[{Sn}:{Sn+15}], v[{Kn}:{Kn+3}], v[{QF}:{QF+3}], v[{NEGM}:{NEGM+15}]")
            e(f"ds_read_b128 v[{Kc}:{Kc+3}], v120 offset:{koff}")
        for i in range(16): e(f"v_exp_f32 v{Sc+i}, v{Sc+i}")
        e("s_nop 0")
        for i in range(8): e(f"v_cvt_pk_bf16_f32 v{P+i}, v{Sc+2*i}, v{Sc+2*i+1}")
        e("s_waitcnt lgkmcnt(1)" if not last else "s_waitcnt lgkmcnt(0)"); e("s_nop 0")
        e(f"v_mfma_f32_32x32x16_bf16 v[{OA}:{OA+15}], v[{Vc}:{Vc+3}], v[{P}:{P+3}], v[{OA}:{OA+15}]")
        e(f"v_mfma_f32_32x32x16_bf16 v[{OA}:{OA+15}], v[{Vc+4}:{Vc+7}], v[{P+4}:{P+7}], v[{OA}:{OA+15}]")
        if last: return
        e("s_mov_b64 exec, s[64:65]")
        e(f"ds_read_b128 v[{Vn}:{Vn+3}], v121 offset:{voff}"); e(f"ds_read_b128 v[{Vn+4}:{Vn+7}], v121 offset:{voff+512}")
        e("s_mov_b64 exec, -1")
        maxtree(Sn, T)
        e(f"v_cmp_lt_f32 vcc, 0x42200000, v{T}"); e("s_nop 1")
        e(f"s_cbranch_vccnz K2_SLOW{tag}")
        lab(f"K2_BACK{tag}")
        slow.append((tag, Sn))
    e("s_mov_b32 s66, 0")
    lab("K2_LOOP")
    it("A", SA, SB, KA, KBb, VA, VB, 0, 0)
    it("B", SB, SA, KBb, KA, VB, VA, 1024, 1024)
    e("v_add_u32 v120, 2048, v120"); e("v_add_u32 v121, 2048, v121")
    e("s_add_u32 s66, s66, 1"); e("s_cmp_lt_u32 s66, 31"); e("s_cbranch_scc1 K2_LOOP")
    it("C", SA, SB, KA, KBb, VA, VB, 0, 0)
    it("D", SB, SA, KBb, KA, VB, VA, 0, 0, last=True)
    e("s_nop 15"); e("s_nop 3")
    e(f"v_mov_b32 v{T}, v{OA+8}"); e(f"v_mov_b32 v{T+1}, v{OA+8}"); e("s_nop 1")
    e(f"v_permlane32_swap_b32 v{T}, v{T+1}"); e("s_nop 1")
    e(f"v_rcp_f32 v{T}, v{T}"); e("s_nop 0")
    for i in range(8): e(f"v_mul_f32 v{OA+i}, v{OA+i}, v{T}")
    for i in range(4): e(f"v_cvt_pk_bf16_f32 v{P+i}, v{OA+2*i}, v{OA+2*i+1}")
    e("v_lshlrev_b32 v2, 5, v2"); e("v_lshl_add_u32 v2, v3, 3, v2")
    e("s_lshl_b32 s61, s60, 10"); e(f"s_add_u32 s61, s61, {O}")
    e(f"buffer_store_dwordx2 v[{P}:{P+1}], v2, s[36:39], s61 offen")
    e(f"buffer_store_dwordx2 v[{P+2}:{P+3}], v2, s[36:39], s61 offen offset:16")
    e("s_endpgm")
    for tag, Sn in slow:
        lab(f"K2_SLOW{tag}")
        e("s_nop 15"); e("s_nop 15")
        bothhalves(T, T + 1)
        e(f"v_max_f32 v{T}, 0, v{T}")
        for i in range(16): e(f"v_sub_f32 v{Sn+i}, v{Sn+i}, v{T}")
        for i in range(16): e(f"v_sub_f32 v{NEGM+i}, v{NEGM+i}, v{T}")
        e(f"v_sub_f32 v{T}, 0, v{T}"); e(f"v_exp_f32 v{T}, v{T}"); e("s_nop 0")
        for i in range(16): e(f"v_mul_f32 v{OA+i}, v{OA+i}, v{T}")
        e("s_nop 3")
        e(f"s_branch K2_BACK{tag}")
    lab("K2_MOE")
    srd(24, 4, 5, 512 * 2752); srd(28, 6, 7, 512 * 2752); srd(32, 8, 9, 1376 * 1024)
    e("v_lshrrev_b32 v2, 2, v1"); e("v_mul_u32_u24 v2, 2752, v2"); e("v_and_b32 v3, 3, v1"); e("v_lshl_add_u32 v2, v3, 4, v2")
    e("v_lshlrev_b32 v3, 4, v1")
    e("s_lshl_b32 s60, s2, 6")
    e(f"s_mul_i32 s61, s22, {4*16*2752}"); e("s_add_u32 s60, s60, s61")
    e("s_lshl_b32 s61, s22, 12")
    e("s_lshl_b32 s62, s2, 15"); e("s_add_u32 s62, s62, s61")
    for j in range(4):
        e("s_mov_b32 m0, s61"); e("s_nop 0"); e("buffer_load_dwordx4 v2, s[24:27], s60 offen lds")
        e("s_add_u32 s63, s61, 32768"); e("s_mov_b32 m0, s63"); e("s_nop 0"); e("buffer_load_dwordx4 v2, s[28:31], s60 offen lds")
        e("s_add_u32 s63, s61, 65536"); e("s_mov_b32 m0, s63"); e("s_nop 0"); e("buffer_load_dwordx4 v3, s[32:35], s62 offen lds")
        e(f"s_add_u32 s60, s60, {16*2752}"); e("s_add_u32 s61, s61, 1024"); e("s_add_u32 s62, s62, 1024")
    RV = 8
    e(f"v_add_u32 v4, {R}, v3")
    e("s_movk_i32 s47, 4096")
    for i in range(8): e(f"buffer_load_dwordx4 v[{RV+4*i}:{RV+4*i+3}], v4, s[36:39], {'s47' if i>=4 else '0'} offen offset:{(i%4)*1024}")
    e("v_mov_b32 v5, 0"); e("v_mov_b32 v6, 0")
    e("v_lshlrev_b32 v7, 2, v1"); e("v_sub_u32 v7, 2047, v7")
    e("s_waitcnt vmcnt(0)")
    for i in range(32):
        v = RV + i
        e(f"v_ashrrev_i32 v40, 31, v{v}"); e(f"v_or_b32 v40, 0x80000000, v40"); e(f"v_xor_b32 v40, v40, v{v}")
        e("v_and_b32 v40, 0xffff0000, v40")
        e(f"v_sub_u32 v41, v7, {(i//4)*256 + (i%4)}" if False else f"v_subrev_u32 v41, {(i//4)*256 + (i%4)}, v7")
        e("v_or_b32 v40, v40, v41")
        e("v_min_u32 v41, v5, v40"); e("v_max_u32 v6, v6, v41"); e("v_max_u32 v5, v5, v40")
    def wavemax(v, t):
        e(f"v_mov_b32 v{t}, v{v}")
        for m in ["quad_perm:[1,0,3,2]", "quad_perm:[2,3,0,1]", "row_half_mirror", "row_mirror"]:
            e("s_nop 1"); e(f"v_max_u32_dpp v{t}, v{t}, v{t} {m} row_mask:0xf bank_mask:0xf")
        e(f"ds_swizzle_b32 v{t+1}, v{t} offset:0x401F"); e("s_waitcnt lgkmcnt(0)"); e(f"v_max_u32 v{t}, v{t}, v{t+1}")
        e(f"v_mov_b32 v{t+1}, v{t}"); e("s_nop 1"); e(f"v_permlane32_swap_b32 v{t}, v{t+1}"); e("s_nop 1")
        e(f"v_max_u32 v{t}, v{t}, v{t+1}")
    wavemax(5, 42)
    e("v_cmp_eq_u32 vcc, v5, v42"); e("s_nop 1"); e("v_cndmask_b32 v5, v5, v6, vcc")
    wavemax(5, 44)
    e("s_nop 1"); e("v_readfirstlane_b32 s40, v42"); e("v_readfirstlane_b32 s41, v44"); e("s_nop 3")
    e("s_and_b32 s42, s40, 0x7ff"); e("s_sub_u32 s42, 2047, s42")
    e("s_and_b32 s43, s41, 0x7ff"); e("s_sub_u32 s43, 2047, s43")
    for j in range(2):
        e(f"s_and_b32 s44, s{40+j}, 0xffff0000"); e("v_mov_b32 v40, s44")
        e("v_ashrrev_i32 v41, 31, v40"); e("v_not_b32 v41, v41"); e("v_or_b32 v41, 0x80000000, v41")
        e("v_xor_b32 v40, v40, v41"); e("v_and_b32 v40, 0xffff0000, v40")
        e("v_mul_f32 v40, 0xbfb8aa3b, v40"); e("v_exp_f32 v40, v40"); e("s_nop 0"); e("v_add_f32 v40, 1.0, v40")
        e("v_rcp_f32 v40, v40"); e("s_nop 0"); e("v_cvt_pk_bf16_f32 v40, v40, v40"); e(f"v_lshlrev_b32 v{46+j}, 16, v40")
    e("s_cmp_lg_u32 s2, 0"); e("s_cbranch_scc1 K2_NOSEL"); e("s_cmp_lg_u32 s22, 0"); e("s_cbranch_scc1 K2_NOSEL")
    e("v_mov_b32 v44, s42"); e("v_mov_b32 v45, s43"); e(f"v_mov_b32 v40, {SEL}")
    e("v_cmp_eq_u32 vcc, 0, v1"); e("s_and_saveexec_b64 s[62:63], vcc")
    e("buffer_store_dwordx4 v[44:47], v40, s[36:39], 0 offen"); e("s_mov_b64 exec, s[62:63]")
    lab("K2_NOSEL")
    e("s_cmp_ge_u32 s22, 4"); e("s_cbranch_scc1 K2_MOE_W2")
    XB, ACC, TA = 48, 8, 24
    e("s_and_b32 s44, s22, 1"); e("s_lshr_b32 s45, s22, 1")
    for i in range(64): e(f"v_mov_b32 v{XB+i}, 0")
    e("v_and_b32 v2, 31, v1"); e("v_lshrrev_b32 v3, 5, v1")
    e("v_mov_b32 v4, s42"); e("v_mov_b32 v5, s43"); e("v_cmp_eq_u32 vcc, 1, v2"); e("s_nop 1"); e("v_cndmask_b32 v4, v4, v5, vcc")
    e("v_lshlrev_b32 v4, 10, v4"); e("v_lshl_add_u32 v4, v3, 4, v4"); e("s_lshl_b32 s46, s45, 9"); e("v_add_u32 v4, s46, v4")
    e("v_cmp_gt_u32 vcc, 2, v2"); e("s_and_saveexec_b64 s[62:63], vcc")
    for kk in range(16): e(f"buffer_load_dwordx4 v[{XB+4*kk}:{XB+4*kk+3}], v4, s[36:39], 0 offen offset:{kk*32}")
    e("s_mov_b64 exec, s[62:63]")
    e("v_lshlrev_b32 v6, 9, v3"); e("v_bfe_u32 v7, v1, 2, 2"); e("v_lshl_add_u32 v6, v7, 6, v6")
    e("v_bfe_u32 v7, v1, 4, 1"); e("v_lshl_add_u32 v6, v7, 5, v6"); e("v_and_b32 v7, 3, v1"); e("v_lshl_add_u32 v6, v7, 3, v6")
    e("s_lshl_b32 s46, s44, 15"); e("s_lshl_b32 s47, s45, 14"); e("s_add_u32 s46, s46, s47"); e("v_add_u32 v6, s46, v6")
    for i in range(16): e(f"v_mov_b32 v{ACC+i}, 0")
    e("s_waitcnt vmcnt(0)"); e("s_barrier")
    for k0 in range(0, 16, 4):
        for kk in range(k0, k0 + 4):
            a = TA + 4 * (kk - k0)
            e(f"ds_read_b64_tr_b16 v[{a}:{a+1}], v6 offset:{kk*1024}"); e(f"ds_read_b64_tr_b16 v[{a+2}:{a+3}], v6 offset:{kk*1024+256}")
        e("s_waitcnt lgkmcnt(0)")
        for kk in range(k0, k0 + 4):
            a = TA + 4 * (kk - k0)
            e(f"v_mfma_f32_32x32x16_bf16 v[{ACC}:{ACC+15}], v[{a}:{a+3}], v[{XB+4*kk}:{XB+4*kk+3}], v[{ACC}:{ACC+15}]")
    e("s_nop 15"); e("s_nop 3")
    e("s_lshl_b32 s46, s22, 8"); e("v_lshlrev_b32 v7, 5, v3"); e("v_lshl_add_u32 v7, v2, 2, v7"); e("v_add_u32 v7, s46, v7")
    e("v_add_u32 v7, 98304, v7")
    e("v_cmp_gt_u32 vcc, 2, v2"); e("s_and_saveexec_b64 s[62:63], vcc")
    for r in range(16): e(f"ds_write_b32 v7, v{ACC+r} offset:{(8*(r//4)+(r%4))*8}")
    e("s_mov_b64 exec, s[62:63]")
    e("s_waitcnt lgkmcnt(0)"); e("s_barrier")
    e("s_branch K2_MOE_H")
    lab("K2_MOE_W2")
    e("s_waitcnt vmcnt(0)"); e("s_barrier"); e("s_barrier")
    lab("K2_MOE_H")
    e("v_and_b32 v2, 31, v1"); e("v_lshrrev_b32 v3, 5, v1")
    e("v_lshlrev_b32 v7, 3, v2"); e("v_lshl_add_u32 v7, v3, 2, v7"); e("v_add_u32 v7, 98304, v7")
    e("ds_read_b32 v8, v7"); e("ds_read_b32 v9, v7 offset:512"); e("ds_read_b32 v10, v7 offset:256"); e("ds_read_b32 v11, v7 offset:768")
    e("s_waitcnt lgkmcnt(0)")
    e("v_add_f32 v8, v8, v9"); e("v_add_f32 v10, v10, v11")
    e("v_cvt_pk_bf16_f32 v8, v8, v10"); e("v_lshlrev_b32 v9, 16, v8"); e("v_and_b32 v10, 0xffff0000, v8")
    e("v_mul_f32 v11, 0xbfb8aa3b, v9"); e("v_exp_f32 v11, v11"); e("s_nop 0"); e("v_add_f32 v11, 1.0, v11"); e("v_rcp_f32 v11, v11"); e("s_nop 0")
    e("v_mul_f32 v9, v9, v11"); e("v_cvt_pk_bf16_f32 v9, v9, v9"); e("v_lshlrev_b32 v9, 16, v9")
    e("v_mul_f32 v9, v9, v10"); e("v_cvt_pk_bf16_f32 v9, v9, v9")
    e("v_lshlrev_b32 v7, 1, v2"); e("v_lshl_add_u32 v7, v3, 6, v7"); e("v_add_u32 v7, 99328, v7")
    e("s_cmp_lg_u32 s22, 0"); e("s_cbranch_scc1 K2_MOE_NOH")
    e("ds_write_b16 v7, v9"); e("s_waitcnt lgkmcnt(0)")
    lab("K2_MOE_NOH")
    e("s_barrier")
    HBv = 40
    for i in range(8): e(f"v_mov_b32 v{HBv+i}, 0")
    e("v_lshlrev_b32 v7, 6, v2"); e("v_lshl_add_u32 v7, v3, 4, v7"); e("v_add_u32 v7, 99328, v7")
    e("v_cmp_gt_u32 vcc, 2, v2"); e("s_and_saveexec_b64 s[62:63], vcc")
    e(f"ds_read_b128 v[{HBv}:{HBv+3}], v7"); e(f"ds_read_b128 v[{HBv+4}:{HBv+7}], v7 offset:32")
    e("s_mov_b64 exec, s[62:63]")
    e("v_lshlrev_b32 v6, 13, v3"); e("v_bfe_u32 v8, v1, 2, 2"); e("v_lshl_add_u32 v6, v8, 10, v6")
    e("v_bfe_u32 v8, v1, 4, 1"); e("v_lshl_add_u32 v6, v8, 5, v6"); e("v_and_b32 v8, 3, v1"); e("v_lshl_add_u32 v6, v8, 3, v6")
    e("s_lshl_b32 s46, s22, 7"); e("v_add_u32 v6, s46, v6"); e("v_add_u32 v6, 65536, v6")
    e("s_lshl_b32 s46, s2, 12"); e("s_lshl_b32 s47, s22, 8"); e("s_add_u32 s46, s46, s47"); e(f"s_add_u32 s46, s46, {YP}")
    e("v_lshlrev_b32 v5, 11, v2"); e("v_lshl_add_u32 v5, v3, 4, v5")
    for tl in range(2):
        for i in range(16): e(f"v_mov_b32 v{ACC+i}, 0")
        for kk in range(2):
            e(f"ds_read_b64_tr_b16 v[{TA+4*kk}:{TA+4*kk+1}], v6 offset:{kk*16384+tl*64}")
            e(f"ds_read_b64_tr_b16 v[{TA+4*kk+2}:{TA+4*kk+3}], v6 offset:{kk*16384+4096+tl*64}")
        e("s_waitcnt lgkmcnt(0)")
        for kk in range(2):
            e(f"v_mfma_f32_32x32x16_bf16 v[{ACC}:{ACC+15}], v[{TA+4*kk}:{TA+4*kk+3}], v[{HBv+4*kk}:{HBv+4*kk+3}], v[{ACC}:{ACC+15}]")
        e("s_nop 15"); e("s_nop 3")
        e("v_cmp_gt_u32 vcc, 2, v2"); e("s_and_saveexec_b64 s[62:63], vcc")
        for g in range(4): e(f"buffer_store_dwordx4 v[{ACC+4*g}:{ACC+4*g+3}], v5, s[36:39], s46 offen offset:{tl*128+g*32}")
        e("s_mov_b64 exec, s[62:63]")
    lab("K2_END")
    e("s_endpgm")
```

```python
import sys
NAME = "parallel_sum__grouped_kv_mqa__moe_arch_mod__prompt"
XN, Q, KB, VT, R, O, YP, SEL = 0, 0x200000, 0x400000, 0x410000, 0x420000, 0x500000, 0x700000, 0x740000
WS_BYTES = 0x800000
NMOE = 43
L = []
def e(s=""): L.append("    " + s if s and not s.endswith(":") else s)
def lab(s): L.append(s + ":")

def srd(d, lo, hi, nbytes):
    e(f"s_mov_b32 s{d}, s{lo}"); e(f"s_and_b32 s{d+1}, s{hi}, 0xffff")
    e(f"s_mov_b32 s{d+2}, {nbytes:#x}"); e(f"s_mov_b32 s{d+3}, 0x00020000")

def kd(name, vgpr, sgpr=102):
    acc = (vgpr + 3) // 4 * 4
    return f""".section .rodata,"a"
.p2align 6
.amdhsa_kernel {name}
  .amdhsa_next_free_vgpr {vgpr}
  .amdhsa_next_free_sgpr {sgpr}
  .amdhsa_accum_offset {acc}
  .amdhsa_group_segment_fixed_size 0
  .amdhsa_kernarg_size 104
  .amdhsa_user_sgpr_count 2
  .amdhsa_user_sgpr_kernarg_segment_ptr 1
  .amdhsa_system_sgpr_workgroup_id_x 1
.end_amdhsa_kernel
.text"""

def header(name):
    L.append(f".globl {name}\n.p2align 8\n.type {name},@function\n{name}:")

XNL = 0; XROW = 1040; WL = 64 * XROW
K1_LDS = WL + 65536

def stage_w64(srdW, s_w, s_cb, vtmp):
    e(f"v_lshrrev_b32 v{vtmp}, 3, v1"); e(f"v_lshlrev_b32 v{vtmp}, 10, v{vtmp}")
    e(f"v_and_b32 v{vtmp+1}, 7, v1"); e(f"v_lshlrev_b32 v{vtmp+1}, 4, v{vtmp+1}")
    e(f"v_add_u32 v{vtmp}, v{vtmp}, v{vtmp+1}")
    e(f"s_lshl_b32 s60, s{s_w}, 17")
    e(f"s_lshl_b32 s61, s{s_cb}, 7"); e("s_add_u32 s60, s60, s61")
    e(f"s_lshl_b32 s61, s{s_w}, 14"); e(f"s_add_u32 s61, s61, {WL}")
    for j in range(16):
        e("s_mov_b32 m0, s61"); e("s_nop 0")
        e(f"buffer_load_dwordx4 v{vtmp}, s[{srdW}:{srdW+3}], s60 offen lds")
        e("s_add_u32 s60, s60, 8192"); e("s_add_u32 s61, s61, 1024")

def gemm_w64(acc, vA, vB_getter, ta, tb):
    for i in range(16): e(f"v_mov_b32 v{acc+i}, 0")
    for k0 in range(0, 32, 4):
        for kk in range(k0, k0 + 4):
            a = ta + 4 * (kk - k0)
            e(f"ds_read_b64_tr_b16 v[{a}:{a+1}], v{vA} offset:{kk*2048}")
            e(f"ds_read_b64_tr_b16 v[{a+2}:{a+3}], v{vA} offset:{kk*2048+512}")
            vB_getter(kk, tb + 4 * (kk - k0), True)
        e("s_waitcnt lgkmcnt(0)")
        for kk in range(k0, k0 + 4):
            a = ta + 4 * (kk - k0)
            b = vB_getter(kk, tb + 4 * (kk - k0), False)
            e(f"v_mfma_f32_32x32x16_bf16 v[{acc}:{acc+15}], v[{a}:{a+3}], v[{b}:{b+3}], v[{acc}:{acc+15}]")

def addrA_w64(vA, s_wc_times64, t):
    e(f"v_lshrrev_b32 v{t}, 5, v1"); e(f"v_lshlrev_b32 v{vA}, 10, v{t}")
    e(f"v_bfe_u32 v{t}, v1, 2, 2"); e(f"v_lshl_add_u32 v{vA}, v{t}, 7, v{vA}")
    e(f"v_bfe_u32 v{t}, v1, 4, 1"); e(f"v_lshl_add_u32 v{vA}, v{t}, 5, v{vA}")
    e(f"v_and_b32 v{t}, 3, v1"); e(f"v_lshl_add_u32 v{vA}, v{t}, 3, v{vA}")
    e(f"v_add_u32 v{vA}, s{s_wc_times64}, v{vA}")
    e(f"v_add_u32 v{vA}, {WL}, v{vA}")

def k1():
    header("prep_kernel")
    e("s_cmp_ge_u32 s2, 288"); e("s_cbranch_scc1 K1_END")
    e("s_load_dwordx2 s[4:5], s[0:1], 0"); e("s_load_dwordx2 s[6:7], s[0:1], 8")
    e("s_load_dwordx4 s[8:11], s[0:1], 16"); e("s_load_dwordx2 s[12:13], s[0:1], 48")
    e("s_load_dwordx2 s[14:15], s[0:1], 96")
    e("s_and_b32 s20, s2, 31"); e("s_lshr_b32 s21, s2, 5")
    e("v_and_b32 v1, 63, v0"); e("v_lshrrev_b32 v2, 6, v0"); e("s_nop 0")
    e("v_readfirstlane_b32 s22, v2")
    e("s_waitcnt lgkmcnt(0)")
    srd(24, 4, 5, 0x200000); srd(28, 6, 7, 0x80000); srd(32, 8, 9, 0x4000); srd(44, 10, 11, 0x4000)
    srd(36, 14, 15, WS_BYTES); srd(40, 12, 13, 0x400)
    e("s_and_b32 s23, s22, 1"); e("s_lshr_b32 s19, s22, 1")
    e("s_cmp_eq_u32 s21, 8"); e("s_cbranch_scc1 K1_STAGE_KV")
    stage_w64(28, 22, 21, 2)
    e("s_branch K1_STAGED")
    lab("K1_STAGE_KV")
    e("v_lshlrev_b32 v2, 4, v1")
    e("s_lshl_b32 s60, s22, 12"); e(f"s_add_u32 s61, s60, {WL}")
    for j in range(4):
        e("s_mov_b32 m0, s61"); e("s_nop 0")
        e("buffer_load_dwordx4 v2, s[32:35], s60 offen lds")
        e(f"s_add_u32 s62, s61, 16384"); e("s_mov_b32 m0, s62"); e("s_nop 0")
        e("buffer_load_dwordx4 v2, s[44:47], s60 offen lds")
        e("s_add_u32 s60, s60, 1024"); e("s_add_u32 s61, s61, 1024")
    lab("K1_STAGED")
    X = 64
    e("v_lshrrev_b32 v2, 2, v1"); e("s_lshl_b32 s60, s20, 6"); e("s_lshl_b32 s61, s22, 4"); e("s_add_u32 s60, s60, s61")
    e("v_add_u32 v3, s60, v2")
    e("v_and_b32 v4, 3, v1"); e("v_lshlrev_b32 v4, 4, v4")
    e("v_lshl_add_u32 v5, v3, 10, v4")
    for j in range(16):
        e(f"buffer_load_dwordx4 v[{X+4*j}:{X+4*j+3}], v5, s[24:27], 0 offen offset:{j*64}")
    WR = 128
    e("s_cmp_lg_u32 s21, 0"); e("s_cbranch_scc1 K1_NOWR")
    for j in range(16):
        e(f"buffer_load_dwordx4 v[{WR+4*j}:{WR+4*j+3}], v4, s[40:43], 0 offen offset:{j*64}")
    lab("K1_NOWR")
    e("s_waitcnt vmcnt(0)")
    e("v_mov_b32 v6, 0"); e("v_mov_b32 v7, 0")
    for i in range(64):
        e(f"v_lshlrev_b32 v8, 16, v{X+i}"); e(f"v_and_b32 v9, 0xffff0000, v{X+i}")
        e("v_add_f32 v6, v6, v8"); e("v_add_f32 v7, v7, v9")
    e("v_add_f32 v6, v6, v7")
    def quadsum(v):
        e("s_nop 1"); e(f"v_add_f32_dpp v{v}, v{v}, v{v} quad_perm:[1,0,3,2] row_mask:0xf bank_mask:0xf")
        e("s_nop 1"); e(f"v_add_f32_dpp v{v}, v{v}, v{v} quad_perm:[2,3,0,1] row_mask:0xf bank_mask:0xf")
    quadsum(6)
    e("v_mul_f32 v6, 0x3b000000, v6")
    e("v_mov_b32 v7, 0"); e("v_mov_b32 v10, 0")
    for i in range(64):
        e(f"v_lshlrev_b32 v8, 16, v{X+i}"); e(f"v_and_b32 v9, 0xffff0000, v{X+i}")
        e("v_sub_f32 v8, v8, v6"); e("v_sub_f32 v9, v9, v6")
        e("v_fmac_f32 v7, v8, v8"); e("v_fmac_f32 v10, v9, v9")
    e("v_add_f32 v7, v7, v10")
    quadsum(7)
    e("v_mul_f32 v7, 0x3b000000, v7")
    e("v_cvt_pk_bf16_f32 v8, v6, v7")
    e("v_lshlrev_b32 v6, 16, v8"); e("v_and_b32 v7, 0xffff0000, v8")
    e("v_add_f32 v7, 0x3727c5ac, v7")
    e("v_cvt_pk_bf16_f32 v7, v7, v7"); e("v_lshlrev_b32 v7, 16, v7")
    e("v_sqrt_f32 v7, v7"); e("s_nop 0")
    e("v_cvt_pk_bf16_f32 v7, v7, v7"); e("v_lshlrev_b32 v7, 16, v7")
    e("v_rcp_f32 v7, v7"); e("s_nop 0")
    for i in range(64):
        e(f"v_lshlrev_b32 v8, 16, v{X+i}"); e(f"v_and_b32 v9, 0xffff0000, v{X+i}")
        e("v_sub_f32 v8, v8, v6"); e("v_sub_f32 v9, v9, v6")
        e("v_cvt_pk_bf16_f32 v8, v8, v9")
        e("v_lshlrev_b32 v9, 16, v8"); e("v_and_b32 v8, 0xffff0000, v8")
        e("v_mul_f32 v9, v9, v7"); e("v_mul_f32 v8, v8, v7")
        e(f"v_cvt_pk_bf16_f32 v{X+i}, v9, v8")
    e(f"v_sub_u32 v8, v3, s60"); e("s_lshl_b32 s62, s22, 4"); e("v_add_u32 v8, s62, v8")
    e(f"v_mul_u32_u24 v8, {XROW}, v8"); e("v_add_u32 v8, v8, v4")
    for j in range(16):
        e(f"ds_write_b128 v8, v[{X+4*j}:{X+4*j+3}] offset:{j*64}")
    e("s_cmp_lg_u32 s21, 0"); e("s_cbranch_scc1 K1_NOXN")
    for j in range(16):
        e(f"buffer_store_dwordx4 v[{X+4*j}:{X+4*j+3}], v5, s[36:39], 0 offen offset:{j*64}")
    e("v_mov_b32 v9, 0")
    for i in range(64): e(f"v_dot2_f32_bf16 v9, v{X+i}, v{WR+i}, v9")
    e("s_nop 4"); quadsum(9)
    e("v_cvt_pk_bf16_f32 v9, v9, v9"); e("v_lshlrev_b32 v9, 16, v9")
    e("v_lshlrev_b32 v10, 2, v3"); e(f"v_add_u32 v10, {R}, v10")
    e("v_and_b32 v11, 3, v1"); e("v_cmp_eq_u32 vcc, 0, v11"); e("s_and_saveexec_b64 s[62:63], vcc")
    e("buffer_store_dword v9, v10, s[36:39], 0 offen")
    e("s_mov_b64 exec, s[62:63]")
    lab("K1_NOXN")
    e("s_waitcnt vmcnt(0) lgkmcnt(0)"); e("s_barrier")
    ACC, TA, TB = 16, 32, 48
    e("v_and_b32 v8, 31, v1"); e("s_lshl_b32 s62, s23, 5"); e("v_add_u32 v8, s62, v8")
    e(f"v_mul_u32_u24 v9, {XROW}, v8"); e("v_lshrrev_b32 v10, 5, v1"); e("v_lshl_add_u32 v9, v10, 4, v9")
    e("s_lshl_b32 s63, s20, 6"); e("v_add_u32 v8, s63, v8")
    def vB(kk, t, issue):
        if issue: e(f"ds_read_b128 v[{t}:{t+3}], v9 offset:{kk*32}")
        return t
    e("s_cmp_eq_u32 s21, 8"); e("s_cbranch_scc1 K1_KV")
    e("s_lshl_b32 s62, s19, 6")
    addrA_w64(11, 62, 12)
    gemm_w64(ACC, 11, vB, TA, TB)
    e("s_nop 15"); e("s_nop 3")
    e("s_lshl_b32 s62, s21, 7"); e("s_lshl_b32 s63, s19, 6"); e("s_add_u32 s62, s62, s63")
    e("v_lshlrev_b32 v12, 10, v8"); e("v_lshl_add_u32 v12, v10, 3, v12"); e("v_add_u32 v12, s62, v12")
    e(f"v_add_u32 v12, {Q}, v12")
    e("s_mov_b32 s62, 0x3eb8aa3b")
    for i in range(16): e(f"v_mul_f32 v{ACC+i}, s62, v{ACC+i}")
    for g in range(4):
        e(f"v_cvt_pk_bf16_f32 v{TA+2*g}, v{ACC+4*g}, v{ACC+4*g+1}")
        e(f"v_cvt_pk_bf16_f32 v{TA+2*g+1}, v{ACC+4*g+2}, v{ACC+4*g+3}")
        e(f"buffer_store_dwordx2 v[{TA+2*g}:{TA+2*g+1}], v12, s[36:39], 0 offen offset:{g*16}")
    e("s_branch K1_END")
    lab("K1_KV")
    e("s_cmp_lg_u32 s19, 0"); e("s_cbranch_scc1 K1_END")
    e("v_lshrrev_b32 v12, 5, v1"); e("v_lshlrev_b32 v11, 8, v12")
    e("v_bfe_u32 v12, v1, 2, 2"); e("v_lshl_add_u32 v11, v12, 5, v11")
    e("v_bfe_u32 v12, v1, 4, 1"); e("v_lshl_add_u32 v11, v12, 14, v11")
    e("v_and_b32 v12, 3, v1"); e("v_lshl_add_u32 v11, v12, 3, v11")
    e(f"v_add_u32 v11, {WL}, v11")
    for i in range(16): e(f"v_mov_b32 v{ACC+i}, 0")
    for k0 in range(0, 32, 4):
        for kk in range(k0, k0 + 4):
            a = TA + 4 * (kk - k0)
            e(f"ds_read_b64_tr_b16 v[{a}:{a+1}], v11 offset:{kk*512}")
            e(f"ds_read_b64_tr_b16 v[{a+2}:{a+3}], v11 offset:{kk*512+128}")
            vB(kk, TB + 4 * (kk - k0), True)
        e("s_waitcnt lgkmcnt(0)")
        for kk in range(k0, k0 + 4):
            a = TA + 4 * (kk - k0); b = TB + 4 * (kk - k0)
            e(f"v_mfma_f32_32x32x16_bf16 v[{ACC}:{ACC+15}], v[{a}:{a+3}], v[{b}:{b+3}], v[{ACC}:{ACC+15}]")
    e("s_nop 15"); e("s_nop 3")
    e("v_lshlrev_b32 v12, 5, v8"); e("v_lshl_add_u32 v12, v10, 3, v12"); e(f"v_add_u32 v12, {KB}, v12")
    for g in range(2):
        e(f"v_cvt_pk_bf16_f32 v{TA+2*g}, v{ACC+4*g}, v{ACC+4*g+1}")
        e(f"v_cvt_pk_bf16_f32 v{TA+2*g+1}, v{ACC+4*g+2}, v{ACC+4*g+3}")
        e(f"buffer_store_dwordx2 v[{TA+2*g}:{TA+2*g+1}], v12, s[36:39], 0 offen offset:{g*16}")
    e("v_lshrrev_b32 v12, 4, v8"); e("v_lshlrev_b32 v12, 9, v12")
    e("v_bfe_u32 v13, v8, 2, 1"); e("v_lshl_add_u32 v12, v13, 8, v12")
    e("v_bfe_u32 v13, v8, 3, 1"); e("v_lshl_add_u32 v12, v13, 3, v12")
    e("v_and_b32 v13, 3, v8"); e("v_lshl_add_u32 v12, v13, 1, v12")
    e("v_lshl_add_u32 v12, v10, 6, v12"); e(f"v_add_u32 v12, {VT}, v12")
    for g in range(2, 4):
        for i in range(4):
            e(f"v_cvt_pk_bf16_f32 v13, v{ACC+4*g+i}, v{ACC+4*g+i}")
            e(f"buffer_store_short v13, v12, s[36:39], 0 offen offset:{(8*(g-2)+i)*16}")
    lab("K1_END")
    e("s_endpgm")

def k3():
    header("out_kernel")
    e("s_cmp_ge_u32 s2, 256"); e("s_cbranch_scc1 K3_END")
    e("s_load_dwordx2 s[4:5], s[0:1], 0"); e("s_load_dwordx2 s[6:7], s[0:1], 32")
    e("s_load_dwordx2 s[8:9], s[0:1], 80"); e("s_load_dwordx2 s[14:15], s[0:1], 96")
    e("s_and_b32 s20, s2, 31"); e("s_lshr_b32 s21, s2, 5")
    e("v_and_b32 v1, 63, v0"); e("v_lshrrev_b32 v2, 6, v0"); e("s_nop 0")
    e("v_readfirstlane_b32 s22, v2")
    e("s_waitcnt lgkmcnt(0)")
    e(f"s_add_u32 s16, s14, {SEL}"); e("s_addc_u32 s17, s15, 0")
    e("s_load_dwordx4 s[48:51], s[16:17], 0")
    srd(24, 4, 5, 0x200000); srd(28, 6, 7, 0x80000); srd(32, 8, 9, 0x200000); srd(36, 14, 15, WS_BYTES)
    e("s_and_b32 s23, s22, 1"); e("s_lshr_b32 s19, s22, 1")
    stage_w64(28, 22, 21, 2)
    ACC, TA, BB = 16, 32, 64
    e("v_and_b32 v8, 31, v1"); e("s_lshl_b32 s62, s23, 5"); e("s_lshl_b32 s63, s20, 6"); e("s_add_u32 s62, s62, s63")
    e("v_add_u32 v8, s62, v8")
    e("v_lshrrev_b32 v10, 5, v1")
    e("v_lshlrev_b32 v9, 10, v8"); e("v_lshl_add_u32 v9, v10, 4, v9"); e(f"v_add_u32 v9, {O}, v9")
    for kk in range(32):
        e(f"buffer_load_dwordx4 v[{BB+4*kk}:{BB+4*kk+3}], v9, s[36:39], 0 offen offset:{kk*32}")
    e("s_lshl_b32 s62, s21, 7"); e("s_lshl_b32 s63, s19, 6"); e("s_add_u32 s62, s62, s63")
    e("v_lshlrev_b32 v12, 10, v8"); e("v_lshl_add_u32 v12, v10, 3, v12"); e("v_add_u32 v12, s62, v12")
    XX, XXN = 192, 200
    for g in range(4):
        e(f"buffer_load_dwordx2 v[{XX+2*g}:{XX+2*g+1}], v12, s[24:27], 0 offen offset:{g*16}")
        e(f"buffer_load_dwordx2 v[{XXN+2*g}:{XXN+2*g+1}], v12, s[36:39], 0 offen offset:{g*16}")
    e("s_lshl_b32 s62, s19, 6")
    addrA_w64(11, 62, 13)
    e("s_waitcnt vmcnt(0)"); e("s_barrier")
    gemm_w64(ACC, 11, lambda kk, t, issue: BB + 4 * kk, TA, 0)
    e("s_nop 15"); e("s_nop 3")
    UP = 208
    for g in range(4):
        for p in range(2):
            e(f"v_lshlrev_b32 v{UP+4*g+2*p}, 16, v{XXN+2*g+p}"); e(f"v_and_b32 v{UP+4*g+2*p+1}, 0xffff0000, v{XXN+2*g+p}")
    e("s_waitcnt lgkmcnt(0)")
    for j in range(2):
        e(f"v_cmp_eq_u32 vcc, s{48+j}, v8"); e("s_and_saveexec_b64 s[62:63], vcc"); e(f"s_cbranch_execz K3_NOMOE{j}")
        e("s_lshl_b32 s60, s21, 8"); e("s_lshl_b32 s61, s19, 7"); e("s_add_u32 s60, s60, s61")
        e(f"v_lshlrev_b32 v13, 4, v10"); e("v_add_u32 v13, s60, v13"); e(f"v_add_u32 v13, {YP + j*2048}, v13")
        for i in range(16): e(f"v_mov_b32 v{TA+i}, 0")
        for p in range(NMOE):
            for g in range(4):
                e(f"buffer_load_dwordx4 v[{BB+4*g}:{BB+4*g+3}], v13, s[36:39], 0 offen offset:{g*32}")
            e("s_waitcnt vmcnt(0)")
            for i in range(16): e(f"v_add_f32 v{TA+i}, v{TA+i}, v{BB+i}")
            e("v_add_u32 v13, 4096, v13")
        for i in range(16):
            e(f"v_cvt_pk_bf16_f32 v{TA+i}, v{TA+i}, v{TA+i}"); e(f"v_lshlrev_b32 v{TA+i}, 16, v{TA+i}")
            e(f"v_mul_f32 v{TA+i}, s{50+j}, v{TA+i}")
            e(f"v_cvt_pk_bf16_f32 v{TA+i}, v{TA+i}, v{TA+i}"); e(f"v_lshlrev_b32 v{TA+i}, 16, v{TA+i}")
            e(f"v_add_f32 v{UP+i}, v{UP+i}, v{TA+i}")
            e(f"v_cvt_pk_bf16_f32 v{UP+i}, v{UP+i}, v{UP+i}"); e(f"v_lshlrev_b32 v{UP+i}, 16, v{UP+i}")
        lab(f"K3_NOMOE{j}")
        e("s_mov_b64 exec, s[62:63]")
    for g in range(4):
        for p in range(2):
            a0, a1 = ACC + 4 * g + 2 * p, ACC + 4 * g + 2 * p + 1
            e(f"v_cvt_pk_bf16_f32 v13, v{a0}, v{a1}")
            e(f"v_lshlrev_b32 v{a0}, 16, v13"); e(f"v_and_b32 v{a1}, 0xffff0000, v13")
            e(f"v_lshlrev_b32 v13, 16, v{XX+2*g+p}"); e(f"v_add_f32 v{a0}, v{a0}, v13")
            e(f"v_and_b32 v13, 0xffff0000, v{XX+2*g+p}"); e(f"v_add_f32 v{a1}, v{a1}, v13")
            e(f"v_cvt_pk_bf16_f32 v13, v{a0}, v{a1}")
            e(f"v_lshlrev_b32 v{a0}, 16, v13"); e(f"v_and_b32 v{a1}, 0xffff0000, v13")
            e(f"v_add_f32 v{a0}, v{a0}, v{UP+4*g+2*p}"); e(f"v_add_f32 v{a1}, v{a1}, v{UP+4*g+2*p+1}")
            e(f"v_cvt_pk_bf16_f32 v{TA+2*g+p}, v{a0}, v{a1}")
        e(f"buffer_store_dwordx2 v[{TA+2*g}:{TA+2*g+1}], v12, s[32:35], 0 offen offset:{g*16}")
    lab("K3_END")
    e("s_endpgm")

from k2 import k2, K2_LDS, K2_VGPR
def main():
    k1(); k2(L, e, lab, srd, header); k3()
    body = "\n".join(L)
    top = open(f"cdna_kernels/{NAME}.s.ref").read().split("; Override launch")[0]
    out = top
    out += f"; @launch kernel=prep_kernel grid=(288,1,1) block=(256,1,1) lds={K1_LDS}\n"
    out += f"; @launch kernel=attn_kernel grid=({256+NMOE},1,1) block=(512,1,1) lds={K2_LDS}\n"
    out += f"; @launch kernel=out_kernel grid=(256,1,1) block=(256,1,1) lds={K1_LDS}\n"
    out += '.amdgcn_target "amdgcn-amd-amdhsa--gfx950"\n.text\n' + body + "\n"
    out += kd("prep_kernel", 192) + "\n" + kd("attn_kernel", K2_VGPR) + "\n" + kd("out_kernel", 224) + "\n"
    open(f"cdna_kernels/{NAME}.s", "w").write(out)
main()
```

```python
import sys
NAME = "parallel_sum__grouped_kv_mqa__moe_arch_mod__prompt"
XN, Q, KB, VT, R, O, YP, SEL = 0, 0x200000, 0x400000, 0x410000, 0x420000, 0x500000, 0x700000, 0x740000
WS_BYTES = 0x800000
NMOE = 43
L = []
def e(s=""): L.append("    " + s if s and not s.endswith(":") else s)
def lab(s): L.append(s + ":")

def srd(d, lo, hi, nbytes):
    e(f"s_mov_b32 s{d}, s{lo}"); e(f"s_and_b32 s{d+1}, s{hi}, 0xffff")
    e(f"s_mov_b32 s{d+2}, {nbytes:#x}"); e(f"s_mov_b32 s{d+3}, 0x00020000")

def kd(name, vgpr, sgpr=102):
    acc = (vgpr + 3) // 4 * 4
    return f""".section .rodata,"a"
.p2align 6
.amdhsa_kernel {name}
  .amdhsa_next_free_vgpr {vgpr}
  .amdhsa_next_free_sgpr {sgpr}
  .amdhsa_accum_offset {acc}
  .amdhsa_group_segment_fixed_size 0
  .amdhsa_kernarg_size 104
  .amdhsa_user_sgpr_count 2
  .amdhsa_user_sgpr_kernarg_segment_ptr 1
  .amdhsa_system_sgpr_workgroup_id_x 1
.end_amdhsa_kernel
.text"""

def header(name):
    L.append(f".globl {name}\n.p2align 8\n.type {name},@function\n{name}:")

XNL = 0; XROW = 1040; WL = 64 * XROW
K1_LDS = WL + 65536

def stage_w64(srdW, s_w, s_cb, vtmp):
    e(f"v_lshrrev_b32 v{vtmp}, 3, v1"); e(f"v_lshlrev_b32 v{vtmp}, 10, v{vtmp}")
    e(f"v_and_b32 v{vtmp+1}, 7, v1"); e(f"v_lshlrev_b32 v{vtmp+1}, 4, v{vtmp+1}")
    e(f"v_add_u32 v{vtmp}, v{vtmp}, v{vtmp+1}")
    e(f"s_lshl_b32 s60, s{s_w}, 17")
    e(f"s_lshl_b32 s61, s{s_cb}, 7"); e("s_add_u32 s60, s60, s61")
    e(f"s_lshl_b32 s61, s{s_w}, 14"); e(f"s_add_u32 s61, s61, {WL}")
    for j in range(16):
        e("s_mov_b32 m0, s61"); e("s_nop 0")
        e(f"buffer_load_dwordx4 v{vtmp}, s[{srdW}:{srdW+3}], s60 offen lds")
        e("s_add_u32 s60, s60, 8192"); e("s_add_u32 s61, s61, 1024")

def gemm_w64(acc, vA, vB_getter, ta, tb):
    for i in range(16): e(f"v_mov_b32 v{acc+i}, 0")
    for k0 in range(0, 32, 4):
        for kk in range(k0, k0 + 4):
            a = ta + 4 * (kk - k0)
            e(f"ds_read_b64_tr_b16 v[{a}:{a+1}], v{vA} offset:{kk*2048}")
            e(f"ds_read_b64_tr_b16 v[{a+2}:{a+3}], v{vA} offset:{kk*2048+512}")
            vB_getter(kk, tb + 4 * (kk - k0), True)
        e("s_waitcnt lgkmcnt(0)")
        for kk in range(k0, k0 + 4):
            a = ta + 4 * (kk - k0)
            b = vB_getter(kk, tb + 4 * (kk - k0), False)
            e(f"v_mfma_f32_32x32x16_bf16 v[{acc}:{acc+15}], v[{a}:{a+3}], v[{b}:{b+3}], v[{acc}:{acc+15}]")

def addrA_w64(vA, s_wc_times64, t):
    e(f"v_lshrrev_b32 v{t}, 5, v1"); e(f"v_lshlrev_b32 v{vA}, 10, v{t}")
    e(f"v_bfe_u32 v{t}, v1, 2, 2"); e(f"v_lshl_add_u32 v{vA}, v{t}, 7, v{vA}")
    e(f"v_bfe_u32 v{t}, v1, 4, 1"); e(f"v_lshl_add_u32 v{vA}, v{t}, 5, v{vA}")
    e(f"v_and_b32 v{t}, 3, v1"); e(f"v_lshl_add_u32 v{vA}, v{t}, 3, v{vA}")
    e(f"v_add_u32 v{vA}, s{s_wc_times64}, v{vA}")
    e(f"v_add_u32 v{vA}, {WL}, v{vA}")

def k1():
    header("prep_kernel")
    e("s_cmp_ge_u32 s2, 288"); e("s_cbranch_scc1 K1_END")
    e("s_load_dwordx2 s[4:5], s[0:1], 0"); e("s_load_dwordx2 s[6:7], s[0:1], 8")
    e("s_load_dwordx4 s[8:11], s[0:1], 16"); e("s_load_dwordx2 s[12:13], s[0:1], 48")
    e("s_load_dwordx2 s[14:15], s[0:1], 96")
    e("s_and_b32 s20, s2, 31"); e("s_lshr_b32 s21, s2, 5")
    e("v_and_b32 v1, 63, v0"); e("v_lshrrev_b32 v2, 6, v0"); e("s_nop 0")
    e("v_readfirstlane_b32 s22, v2")
    e("s_waitcnt lgkmcnt(0)")
    srd(24, 4, 5, 0x200000); srd(28, 6, 7, 0x80000); srd(32, 8, 9, 0x4000); srd(44, 10, 11, 0x4000)
    srd(36, 14, 15, WS_BYTES); srd(40, 12, 13, 0x400)
    e("s_and_b32 s23, s22, 1"); e("s_lshr_b32 s19, s22, 1")
    e("s_cmp_eq_u32 s21, 8"); e("s_cbranch_scc1 K1_STAGE_KV")
    stage_w64(28, 22, 21, 2)
    e("s_branch K1_STAGED")
    lab("K1_STAGE_KV")
    e("v_lshlrev_b32 v2, 4, v1")
    e("s_lshl_b32 s60, s22, 12"); e(f"s_add_u32 s61, s60, {WL}")
    for j in range(4):
        e("s_mov_b32 m0, s61"); e("s_nop 0")
        e("buffer_load_dwordx4 v2, s[32:35], s60 offen lds")
        e(f"s_add_u32 s62, s61, 16384"); e("s_mov_b32 m0, s62"); e("s_nop 0")
        e("buffer_load_dwordx4 v2, s[44:47], s60 offen lds")
        e("s_add_u32 s60, s60, 1024"); e("s_add_u32 s61, s61, 1024")
    lab("K1_STAGED")
    X = 64
    e("v_lshrrev_b32 v2, 2, v1"); e("s_lshl_b32 s60, s20, 6"); e("s_lshl_b32 s61, s22, 4"); e("s_add_u32 s60, s60, s61")
    e("v_add_u32 v3, s60, v2")
    e("v_and_b32 v4, 3, v1"); e("v_lshlrev_b32 v4, 4, v4")
    e("v_lshl_add_u32 v5, v3, 10, v4")
    for j in range(16):
        e(f"buffer_load_dwordx4 v[{X+4*j}:{X+4*j+3}], v5, s[24:27], 0 offen offset:{j*64}")
    WR = 128
    e("s_cmp_lg_u32 s21, 0"); e("s_cbranch_scc1 K1_NOWR")
    for j in range(16):
        e(f"buffer_load_dwordx4 v[{WR+4*j}:{WR+4*j+3}], v4, s[40:43], 0 offen offset:{j*64}")
    lab("K1_NOWR")
    e("s_waitcnt vmcnt(0)")
    e("v_mov_b32 v6, 0"); e("v_mov_b32 v7, 0")
    for i in range(64):
        e(f"v_lshlrev_b32 v8, 16, v{X+i}"); e(f"v_and_b32 v9, 0xffff0000, v{X+i}")
        e("v_add_f32 v6, v6, v8"); e("v_add_f32 v7, v7, v9")
    e("v_add_f32 v6, v6, v7")
    def quadsum(v):
        e("s_nop 1"); e(f"v_add_f32_dpp v{v}, v{v}, v{v} quad_perm:[1,0,3,2] row_mask:0xf bank_mask:0xf")
        e("s_nop 1"); e(f"v_add_f32_dpp v{v}, v{v}, v{v} quad_perm:[2,3,0,1] row_mask:0xf bank_mask:0xf")
    quadsum(6)
    e("v_mul_f32 v6, 0x3b000000, v6")
    e("v_mov_b32 v7, 0"); e("v_mov_b32 v10, 0")
    for i in range(64):
        e(f"v_lshlrev_b32 v8, 16, v{X+i}"); e(f"v_and_b32 v9, 0xffff0000, v{X+i}")
        e("v_sub_f32 v8, v8, v6"); e("v_sub_f32 v9, v9, v6")
        e("v_fmac_f32 v7, v8, v8"); e("v_fmac_f32 v10, v9, v9")
    e("v_add_f32 v7, v7, v10")
    quadsum(7)
    e("v_mul_f32 v7, 0x3b000000, v7")
    e("v_cvt_pk_bf16_f32 v8, v6, v7")
    e("v_lshlrev_b32 v6, 16, v8"); e("v_and_b32 v7, 0xffff0000, v8")
    e("v_add_f32 v7, 0x3727c5ac, v7")
    e("v_cvt_pk_bf16_f32 v7, v7, v7"); e("v_lshlrev_b32 v7, 16, v7")
    e("v_sqrt_f32 v7, v7"); e("s_nop 0")
    e("v_cvt_pk_bf16_f32 v7, v7, v7"); e("v_lshlrev_b32 v7, 16, v7")
    e("v_rcp_f32 v7, v7"); e("s_nop 0")
    for i in range(64):
        e(f"v_lshlrev_b32 v8, 16, v{X+i}"); e(f"v_and_b32 v9, 0xffff0000, v{X+i}")
        e("v_sub_f32 v8, v8, v6"); e("v_sub_f32 v9, v9, v6")
        e("v_cvt_pk_bf16_f32 v8, v8, v9")
        e("v_lshlrev_b32 v9, 16, v8"); e("v_and_b32 v8, 0xffff0000, v8")
        e("v_mul_f32 v9, v9, v7"); e("v_mul_f32 v8, v8, v7")
        e(f"v_cvt_pk_bf16_f32 v{X+i}, v9, v8")
    e(f"v_sub_u32 v8, v3, s60"); e("s_lshl_b32 s62, s22, 4"); e("v_add_u32 v8, s62, v8")
    e(f"v_mul_u32_u24 v8, {XROW}, v8"); e("v_add_u32 v8, v8, v4")
    for j in range(16):
        e(f"ds_write_b128 v8, v[{X+4*j}:{X+4*j+3}] offset:{j*64}")
    e("s_cmp_lg_u32 s21, 0"); e("s_cbranch_scc1 K1_NOXN")
    for j in range(16):
        e(f"buffer_store_dwordx4 v[{X+4*j}:{X+4*j+3}], v5, s[36:39], 0 offen offset:{j*64}")
    e("v_mov_b32 v9, 0")
    for i in range(64): e(f"v_dot2_f32_bf16 v9, v{X+i}, v{WR+i}, v9")
    e("s_nop 4"); quadsum(9)
    e("v_cvt_pk_bf16_f32 v9, v9, v9"); e("v_lshlrev_b32 v9, 16, v9")
    e("v_lshlrev_b32 v10, 2, v3"); e(f"v_add_u32 v10, {R}, v10")
    e("v_and_b32 v11, 3, v1"); e("v_cmp_eq_u32 vcc, 0, v11"); e("s_and_saveexec_b64 s[62:63], vcc")
    e("buffer_store_dword v9, v10, s[36:39], 0 offen")
    e("s_mov_b64 exec, s[62:63]")
    lab("K1_NOXN")
    e("s_waitcnt vmcnt(0) lgkmcnt(0)"); e("s_barrier")
    ACC, TA, TB = 16, 32, 48
    e("v_and_b32 v8, 31, v1"); e("s_lshl_b32 s62, s23, 5"); e("v_add_u32 v8, s62, v8")
    e(f"v_mul_u32_u24 v9, {XROW}, v8"); e("v_lshrrev_b32 v10, 5, v1"); e("v_lshl_add_u32 v9, v10, 4, v9")
    e("s_lshl_b32 s63, s20, 6"); e("v_add_u32 v8, s63, v8")
    def vB(kk, t, issue):
        if issue: e(f"ds_read_b128 v[{t}:{t+3}], v9 offset:{kk*32}")
        return t
    e("s_cmp_eq_u32 s21, 8"); e("s_cbranch_scc1 K1_KV")
    e("s_lshl_b32 s62, s19, 6")
    addrA_w64(11, 62, 12)
    gemm_w64(ACC, 11, vB, TA, TB)
    e("s_nop 15"); e("s_nop 3")
    e("s_lshl_b32 s62, s21, 7"); e("s_lshl_b32 s63, s19, 6"); e("s_add_u32 s62, s62, s63")
    e("v_lshlrev_b32 v12, 10, v8"); e("v_lshl_add_u32 v12, v10, 3, v12"); e("v_add_u32 v12, s62, v12")
    e(f"v_add_u32 v12, {Q}, v12")
    e("s_mov_b32 s62, 0x3eb8aa3b")
    for i in range(16): e(f"v_mul_f32 v{ACC+i}, s62, v{ACC+i}")
    for g in range(4):
        e(f"v_cvt_pk_bf16_f32 v{TA+2*g}, v{ACC+4*g}, v{ACC+4*g+1}")
        e(f"v_cvt_pk_bf16_f32 v{TA+2*g+1}, v{ACC+4*g+2}, v{ACC+4*g+3}")
        e(f"buffer_store_dwordx2 v[{TA+2*g}:{TA+2*g+1}], v12, s[36:39], 0 offen offset:{g*16}")
    e("s_branch K1_END")
    lab("K1_KV")
    e("s_cmp_lg_u32 s19, 0"); e("s_cbranch_scc1 K1_END")
    e("v_lshrrev_b32 v12, 5, v1"); e("v_lshlrev_b32 v11, 8, v12")
    e("v_bfe_u32 v12, v1, 2, 2"); e("v_lshl_add_u32 v11, v12, 5, v11")
    e("v_bfe_u32 v12, v1, 4, 1"); e("v_lshl_add_u32 v11, v12, 14, v11")
    e("v_and_b32 v12, 3, v1"); e("v_lshl_add_u32 v11, v12, 3, v11")
    e(f"v_add_u32 v11, {WL}, v11")
    for i in range(16): e(f"v_mov_b32 v{ACC+i}, 0")
    for k0 in range(0, 32, 4):
        for kk in range(k0, k0 + 4):
            a = TA + 4 * (kk - k0)
            e(f"ds_read_b64_tr_b16 v[{a}:{a+1}], v11 offset:{kk*512}")
            e(f"ds_read_b64_tr_b16 v[{a+2}:{a+3}], v11 offset:{kk*512+128}")
            vB(kk, TB + 4 * (kk - k0), True)
        e("s_waitcnt lgkmcnt(0)")
        for kk in range(k0, k0 + 4):
            a = TA + 4 * (kk - k0); b = TB + 4 * (kk - k0)
            e(f"v_mfma_f32_32x32x16_bf16 v[{ACC}:{ACC+15}], v[{a}:{a+3}], v[{b}:{b+3}], v[{ACC}:{ACC+15}]")
    e("s_nop 15"); e("s_nop 3")
    e("v_lshlrev_b32 v12, 5, v8"); e("v_lshl_add_u32 v12, v10, 3, v12"); e(f"v_add_u32 v12, {KB}, v12")
    for g in range(2):
        e(f"v_cvt_pk_bf16_f32 v{TA+2*g}, v{ACC+4*g}, v{ACC+4*g+1}")
        e(f"v_cvt_pk_bf16_f32 v{TA+2*g+1}, v{ACC+4*g+2}, v{ACC+4*g+3}")
        e(f"buffer_store_dwordx2 v[{TA+2*g}:{TA+2*g+1}], v12, s[36:39], 0 offen offset:{g*16}")
    e("v_lshrrev_b32 v12, 4, v8"); e("v_lshlrev_b32 v12, 9, v12")
    e("v_bfe_u32 v13, v8, 2, 1"); e("v_lshl_add_u32 v12, v13, 8, v12")
    e("v_bfe_u32 v13, v8, 3, 1"); e("v_lshl_add_u32 v12, v13, 3, v12")
    e("v_and_b32 v13, 3, v8"); e("v_lshl_add_u32 v12, v13, 1, v12")
    e("v_lshl_add_u32 v12, v10, 6, v12"); e(f"v_add_u32 v12, {VT}, v12")
    for g in range(2, 4):
        for i in range(4):
            e(f"v_cvt_pk_bf16_f32 v13, v{ACC+4*g+i}, v{ACC+4*g+i}")
            e(f"buffer_store_short v13, v12, s[36:39], 0 offen offset:{(8*(g-2)+i)*16}")
    lab("K1_END")
    e("s_endpgm")

def k3():
    header("out_kernel")
    e("s_cmp_ge_u32 s2, 256"); e("s_cbranch_scc1 K3_END")
    e("s_load_dwordx2 s[4:5], s[0:1], 0"); e("s_load_dwordx2 s[6:7], s[0:1], 32")
    e("s_load_dwordx2 s[8:9], s[0:1], 80"); e("s_load_dwordx2 s[14:15], s[0:1], 96")
    e("s_and_b32 s20, s2, 31"); e("s_lshr_b32 s21, s2, 5")
    e("v_and_b32 v1, 63, v0"); e("v_lshrrev_b32 v2, 6, v0"); e("s_nop 0")
    e("v_readfirstlane_b32 s22, v2")
    e("s_waitcnt lgkmcnt(0)")
    e(f"s_add_u32 s16, s14, {SEL}"); e("s_addc_u32 s17, s15, 0")
    e("s_load_dwordx4 s[48:51], s[16:17], 0")
    srd(24, 4, 5, 0x200000); srd(28, 6, 7, 0x80000); srd(32, 8, 9, 0x200000); srd(36, 14, 15, WS_BYTES)
    e("s_and_b32 s23, s22, 1"); e("s_lshr_b32 s19, s22, 1")
    stage_w64(28, 22, 21, 2)
    ACC, TA, BB = 16, 32, 64
    e("v_and_b32 v8, 31, v1"); e("s_lshl_b32 s62, s23, 5"); e("s_lshl_b32 s63, s20, 6"); e("s_add_u32 s62, s62, s63")
    e("v_add_u32 v8, s62, v8")
    e("v_lshrrev_b32 v10, 5, v1")
    e("v_lshlrev_b32 v9, 10, v8"); e("v_lshl_add_u32 v9, v10, 4, v9"); e(f"v_add_u32 v9, {O}, v9")
    for kk in range(32):
        e(f"buffer_load_dwordx4 v[{BB+4*kk}:{BB+4*kk+3}], v9, s[36:39], 0 offen offset:{kk*32}")
    e("s_lshl_b32 s62, s21, 7"); e("s_lshl_b32 s63, s19, 6"); e("s_add_u32 s62, s62, s63")
    e("v_lshlrev_b32 v12, 10, v8"); e("v_lshl_add_u32 v12, v10, 3, v12"); e("v_add_u32 v12, s62, v12")
    XX, XXN = 192, 200
    for g in range(4):
        e(f"buffer_load_dwordx2 v[{XX+2*g}:{XX+2*g+1}], v12, s[24:27], 0 offen offset:{g*16}")
        e(f"buffer_load_dwordx2 v[{XXN+2*g}:{XXN+2*g+1}], v12, s[36:39], 0 offen offset:{g*16}")
    e("s_lshl_b32 s62, s19, 6")
    addrA_w64(11, 62, 13)
    e("s_waitcnt vmcnt(0)"); e("s_barrier")
    gemm_w64(ACC, 11, lambda kk, t, issue: BB + 4 * kk, TA, 0)
    e("s_nop 15"); e("s_nop 3")
    UP = 208
    for g in range(4):
        for p in range(2):
            e(f"v_lshlrev_b32 v{UP+4*g+2*p}, 16, v{XXN+2*g+p}"); e(f"v_and_b32 v{UP+4*g+2*p+1}, 0xffff0000, v{XXN+2*g+p}")
    e("s_waitcnt lgkmcnt(0)")
    for j in range(2):
        e(f"v_cmp_eq_u32 vcc, s{48+j}, v8"); e("s_and_saveexec_b64 s[62:63], vcc"); e(f"s_cbranch_execz K3_NOMOE{j}")
        e("s_lshl_b32 s60, s21, 8"); e("s_lshl_b32 s61, s19, 7"); e("s_add_u32 s60, s60, s61")
        e(f"v_lshlrev_b32 v13, 4, v10"); e("v_add_u32 v13, s60, v13"); e(f"v_add_u32 v13, {YP + j*2048}, v13")
        for i in range(16): e(f"v_mov_b32 v{TA+i}, 0")
        for p0 in range(0, NMOE, 8):
            n = min(8, NMOE - p0)
            for q in range(n):
                for g in range(4):
                    e(f"buffer_load_dwordx4 v[{BB+16*q+4*g}:{BB+16*q+4*g+3}], v13, s[36:39], 0 offen offset:{g*32}")
                e("v_add_u32 v13, 4096, v13")
            e("s_waitcnt vmcnt(0)")
            for q in range(n):
                for i in range(16): e(f"v_add_f32 v{TA+i}, v{TA+i}, v{BB+16*q+i}")
        for i in range(16):
            e(f"v_cvt_pk_bf16_f32 v{TA+i}, v{TA+i}, v{TA+i}"); e(f"v_lshlrev_b32 v{TA+i}, 16, v{TA+i}")
            e(f"v_mul_f32 v{TA+i}, s{50+j}, v{TA+i}")
            e(f"v_cvt_pk_bf16_f32 v{TA+i}, v{TA+i}, v{TA+i}"); e(f"v_lshlrev_b32 v{TA+i}, 16, v{TA+i}")
            e(f"v_add_f32 v{UP+i}, v{UP+i}, v{TA+i}")
            e(f"v_cvt_pk_bf16_f32 v{UP+i}, v{UP+i}, v{UP+i}"); e(f"v_lshlrev_b32 v{UP+i}, 16, v{UP+i}")
        lab(f"K3_NOMOE{j}")
        e("s_mov_b64 exec, s[62:63]")
    for g in range(4):
        for p in range(2):
            a0, a1 = ACC + 4 * g + 2 * p, ACC + 4 * g + 2 * p + 1
            e(f"v_cvt_pk_bf16_f32 v13, v{a0}, v{a1}")
            e(f"v_lshlrev_b32 v{a0}, 16, v13"); e(f"v_and_b32 v{a1}, 0xffff0000, v13")
            e(f"v_lshlrev_b32 v13, 16, v{XX+2*g+p}"); e(f"v_add_f32 v{a0}, v{a0}, v13")
            e(f"v_and_b32 v13, 0xffff0000, v{XX+2*g+p}"); e(f"v_add_f32 v{a1}, v{a1}, v13")
            e(f"v_cvt_pk_bf16_f32 v13, v{a0}, v{a1}")
            e(f"v_lshlrev_b32 v{a0}, 16, v13"); e(f"v_and_b32 v{a1}, 0xffff0000, v13")
            e(f"v_add_f32 v{a0}, v{a0}, v{UP+4*g+2*p}"); e(f"v_add_f32 v{a1}, v{a1}, v{UP+4*g+2*p+1}")
            e(f"v_cvt_pk_bf16_f32 v{TA+2*g+p}, v{a0}, v{a1}")
        e(f"buffer_store_dwordx2 v[{TA+2*g}:{TA+2*g+1}], v12, s[32:35], 0 offen offset:{g*16}")
    lab("K3_END")
    e("s_endpgm")

from k2 import k2, K2_LDS, K2_VGPR
def main():
    k1(); k2(L, e, lab, srd, header); k3()
    body = "\n".join(L)
    top = open(f"cdna_kernels/{NAME}.s.ref").read().split("; Override launch")[0]
    out = top
    out += f"; @launch kernel=prep_kernel grid=(288,1,1) block=(256,1,1) lds={K1_LDS}\n"
    out += f"; @launch kernel=attn_kernel grid=({256+NMOE},1,1) block=(512,1,1) lds={K2_LDS}\n"
    out += f"; @launch kernel=out_kernel grid=(256,1,1) block=(256,1,1) lds={K1_LDS}\n"
    out += '.amdgcn_target "amdgcn-amd-amdhsa--gfx950"\n.text\n' + body + "\n"
    out += kd("prep_kernel", 192) + "\n" + kd("attn_kernel", K2_VGPR) + "\n" + kd("out_kernel", 224) + "\n"
    open(f"cdna_kernels/{NAME}.s", "w").write(out)
main()
```

```python
import sys
NAME = "parallel_sum__grouped_kv_mqa__moe_arch_mod__prompt"
XN, Q, KB, VT, R, O, YP, SEL = 0, 0x200000, 0x400000, 0x410000, 0x420000, 0x500000, 0x700000, 0x740000
WS_BYTES = 0x800000
NMOE = 43
L = []
def e(s=""): L.append("    " + s if s and not s.endswith(":") else s)
def lab(s): L.append(s + ":")

def srd(d, lo, hi, nbytes):
    e(f"s_mov_b32 s{d}, s{lo}"); e(f"s_and_b32 s{d+1}, s{hi}, 0xffff")
    e(f"s_mov_b32 s{d+2}, {nbytes:#x}"); e(f"s_mov_b32 s{d+3}, 0x00020000")

def kd(name, vgpr, sgpr=102):
    acc = (vgpr + 3) // 4 * 4
    return f""".section .rodata,"a"
.p2align 6
.amdhsa_kernel {name}
  .amdhsa_next_free_vgpr {vgpr}
  .amdhsa_next_free_sgpr {sgpr}
  .amdhsa_accum_offset {acc}
  .amdhsa_group_segment_fixed_size 0
  .amdhsa_kernarg_size 104
  .amdhsa_user_sgpr_count 2
  .amdhsa_user_sgpr_kernarg_segment_ptr 1
  .amdhsa_system_sgpr_workgroup_id_x 1
.end_amdhsa_kernel
.text"""

def header(name):
    L.append(f".globl {name}\n.p2align 8\n.type {name},@function\n{name}:")

XNL = 0; XROW = 1040; WL = 64 * XROW
K1_LDS = WL + 65536

def stage_w64(srdW, s_w, s_cb, vtmp):
    e(f"v_lshrrev_b32 v{vtmp}, 3, v1"); e(f"v_lshlrev_b32 v{vtmp}, 10, v{vtmp}")
    e(f"v_and_b32 v{vtmp+1}, 7, v1"); e(f"v_lshlrev_b32 v{vtmp+1}, 4, v{vtmp+1}")
    e(f"v_add_u32 v{vtmp}, v{vtmp}, v{vtmp+1}")
    e(f"s_lshl_b32 s60, s{s_w}, 17")
    e(f"s_lshl_b32 s61, s{s_cb}, 7"); e("s_add_u32 s60, s60, s61")
    e(f"s_lshl_b32 s61, s{s_w}, 14"); e(f"s_add_u32 s61, s61, {WL}")
    for j in range(16):
        e("s_mov_b32 m0, s61"); e("s_nop 0")
        e(f"buffer_load_dwordx4 v{vtmp}, s[{srdW}:{srdW+3}], s60 offen lds")
        e("s_add_u32 s60, s60, 8192"); e("s_add_u32 s61, s61, 1024")

def gemm_w64(acc, vA, vB_getter, ta, tb):
    for i in range(16): e(f"v_mov_b32 v{acc+i}, 0")
    for k0 in range(0, 32, 4):
        for kk in range(k0, k0 + 4):
            a = ta + 4 * (kk - k0)
            e(f"ds_read_b64_tr_b16 v[{a}:{a+1}], v{vA} offset:{kk*2048}")
            e(f"ds_read_b64_tr_b16 v[{a+2}:{a+3}], v{vA} offset:{kk*2048+512}")
            vB_getter(kk, tb + 4 * (kk - k0), True)
        e("s_waitcnt lgkmcnt(0)")
        for kk in range(k0, k0 + 4):
            a = ta + 4 * (kk - k0)
            b = vB_getter(kk, tb + 4 * (kk - k0), False)
            e(f"v_mfma_f32_32x32x16_bf16 v[{acc}:{acc+15}], v[{a}:{a+3}], v[{b}:{b+3}], v[{acc}:{acc+15}]")

def addrA_w64(vA, s_wc_times64, t):
    e(f"v_lshrrev_b32 v{t}, 5, v1"); e(f"v_lshlrev_b32 v{vA}, 10, v{t}")
    e(f"v_bfe_u32 v{t}, v1, 2, 2"); e(f"v_lshl_add_u32 v{vA}, v{t}, 7, v{vA}")
    e(f"v_bfe_u32 v{t}, v1, 4, 1"); e(f"v_lshl_add_u32 v{vA}, v{t}, 5, v{vA}")
    e(f"v_and_b32 v{t}, 3, v1"); e(f"v_lshl_add_u32 v{vA}, v{t}, 3, v{vA}")
    e(f"v_add_u32 v{vA}, s{s_wc_times64}, v{vA}")
    e(f"v_add_u32 v{vA}, {WL}, v{vA}")

def k1():
    header("prep_kernel")
    e("s_cmp_ge_u32 s2, 288"); e("s_cbranch_scc1 K1_END")
    e("s_load_dwordx2 s[4:5], s[0:1], 0"); e("s_load_dwordx2 s[6:7], s[0:1], 8")
    e("s_load_dwordx4 s[8:11], s[0:1], 16"); e("s_load_dwordx2 s[12:13], s[0:1], 48")
    e("s_load_dwordx2 s[14:15], s[0:1], 96")
    e("s_and_b32 s20, s2, 31"); e("s_lshr_b32 s21, s2, 5")
    e("v_and_b32 v1, 63, v0"); e("v_lshrrev_b32 v2, 6, v0"); e("s_nop 0")
    e("v_readfirstlane_b32 s22, v2")
    e("s_waitcnt lgkmcnt(0)")
    srd(24, 4, 5, 0x200000); srd(28, 6, 7, 0x80000); srd(32, 8, 9, 0x4000); srd(44, 10, 11, 0x4000)
    srd(36, 14, 15, WS_BYTES); srd(40, 12, 13, 0x400)
    e("s_and_b32 s23, s22, 1"); e("s_lshr_b32 s19, s22, 1")
    e("s_cmp_eq_u32 s21, 8"); e("s_cbranch_scc1 K1_STAGE_KV")
    stage_w64(28, 22, 21, 2)
    e("s_branch K1_STAGED")
    lab("K1_STAGE_KV")
    e("v_lshlrev_b32 v2, 4, v1")
    e("s_lshl_b32 s60, s22, 12"); e(f"s_add_u32 s61, s60, {WL}")
    for j in range(4):
        e("s_mov_b32 m0, s61"); e("s_nop 0")
        e("buffer_load_dwordx4 v2, s[32:35], s60 offen lds")
        e(f"s_add_u32 s62, s61, 16384"); e("s_mov_b32 m0, s62"); e("s_nop 0")
        e("buffer_load_dwordx4 v2, s[44:47], s60 offen lds")
        e("s_add_u32 s60, s60, 1024"); e("s_add_u32 s61, s61, 1024")
    lab("K1_STAGED")
    X = 64
    e("v_lshrrev_b32 v2, 2, v1"); e("s_lshl_b32 s60, s20, 6"); e("s_lshl_b32 s61, s22, 4"); e("s_add_u32 s60, s60, s61")
    e("v_add_u32 v3, s60, v2")
    e("v_and_b32 v4, 3, v1"); e("v_lshlrev_b32 v4, 4, v4")
    e("v_lshl_add_u32 v5, v3, 10, v4")
    for j in range(16):
        e(f"buffer_load_dwordx4 v[{X+4*j}:{X+4*j+3}], v5, s[24:27], 0 offen offset:{j*64}")
    WR = 128
    e("s_cmp_lg_u32 s21, 0"); e("s_cbranch_scc1 K1_NOWR")
    for j in range(16):
        e(f"buffer_load_dwordx4 v[{WR+4*j}:{WR+4*j+3}], v4, s[40:43], 0 offen offset:{j*64}")
    lab("K1_NOWR")
    e("s_waitcnt vmcnt(0)")
    e("v_mov_b32 v6, 0"); e("v_mov_b32 v7, 0"); e("v_mov_b32 v11, 0x3f803f80")
    for i in range(64):
        e(f"v_dot2_f32_bf16 v6, v{X+i}, v11, v6"); e(f"v_dot2_f32_bf16 v7, v{X+i}, v{X+i}, v7")
    def quadsum(v):
        e("s_nop 1"); e(f"v_add_f32_dpp v{v}, v{v}, v{v} quad_perm:[1,0,3,2] row_mask:0xf bank_mask:0xf")
        e("s_nop 1"); e(f"v_add_f32_dpp v{v}, v{v}, v{v} quad_perm:[2,3,0,1] row_mask:0xf bank_mask:0xf")
    e("s_nop 4"); quadsum(6); quadsum(7)
    e("v_mul_f32 v6, 0x3b000000, v6"); e("v_mul_f32 v7, 0x3b000000, v7")
    e("v_fma_f32 v7, -v6, v6, v7"); e("v_max_f32 v7, 0, v7")
    e("v_cvt_pk_bf16_f32 v8, v6, v7")
    e("v_lshlrev_b32 v6, 16, v8"); e("v_and_b32 v7, 0xffff0000, v8")
    e("v_add_f32 v7, 0x3727c5ac, v7")
    e("v_cvt_pk_bf16_f32 v7, v7, v7"); e("v_lshlrev_b32 v7, 16, v7")
    e("v_sqrt_f32 v7, v7"); e("s_nop 0")
    e("v_cvt_pk_bf16_f32 v7, v7, v7"); e("v_lshlrev_b32 v7, 16, v7")
    e("v_rcp_f32 v7, v7"); e("s_nop 0")
    e("v_mul_f32 v6, v6, v7"); e("v_sub_f32 v6, 0, v6")
    for i in range(64):
        e(f"v_lshlrev_b32 v8, 16, v{X+i}"); e(f"v_and_b32 v9, 0xffff0000, v{X+i}")
        e("v_fma_f32 v8, v8, v7, v6"); e("v_fma_f32 v9, v9, v7, v6")
        e(f"v_cvt_pk_bf16_f32 v{X+i}, v8, v9")
    e(f"v_sub_u32 v8, v3, s60"); e("s_lshl_b32 s62, s22, 4"); e("v_add_u32 v8, s62, v8")
    e(f"v_mul_u32_u24 v8, {XROW}, v8"); e("v_add_u32 v8, v8, v4")
    for j in range(16):
        e(f"ds_write_b128 v8, v[{X+4*j}:{X+4*j+3}] offset:{j*64}")
    e("s_cmp_lg_u32 s21, 0"); e("s_cbranch_scc1 K1_NOXN")
    for j in range(16):
        e(f"buffer_store_dwordx4 v[{X+4*j}:{X+4*j+3}], v5, s[36:39], 0 offen offset:{j*64}")
    e("v_mov_b32 v9, 0")
    for i in range(64): e(f"v_dot2_f32_bf16 v9, v{X+i}, v{WR+i}, v9")
    e("s_nop 4"); quadsum(9)
    e("v_cvt_pk_bf16_f32 v9, v9, v9"); e("v_lshlrev_b32 v9, 16, v9")
    e("v_lshlrev_b32 v10, 2, v3"); e(f"v_add_u32 v10, {R}, v10")
    e("v_and_b32 v11, 3, v1"); e("v_cmp_eq_u32 vcc, 0, v11"); e("s_and_saveexec_b64 s[62:63], vcc")
    e("buffer_store_dword v9, v10, s[36:39], 0 offen")
    e("s_mov_b64 exec, s[62:63]")
    lab("K1_NOXN")
    e("s_waitcnt vmcnt(0) lgkmcnt(0)"); e("s_barrier")
    ACC, TA, TB = 16, 32, 48
    e("v_and_b32 v8, 31, v1"); e("s_lshl_b32 s62, s23, 5"); e("v_add_u32 v8, s62, v8")
    e(f"v_mul_u32_u24 v9, {XROW}, v8"); e("v_lshrrev_b32 v10, 5, v1"); e("v_lshl_add_u32 v9, v10, 4, v9")
    e("s_lshl_b32 s63, s20, 6"); e("v_add_u32 v8, s63, v8")
    def vB(kk, t, issue):
        if issue: e(f"ds_read_b128 v[{t}:{t+3}], v9 offset:{kk*32}")
        return t
    e("s_cmp_eq_u32 s21, 8"); e("s_cbranch_scc1 K1_KV")
    e("s_lshl_b32 s62, s19, 6")
    addrA_w64(11, 62, 12)
    gemm_w64(ACC, 11, vB, TA, TB)
    e("s_nop 15"); e("s_nop 3")
    e("s_lshl_b32 s62, s21, 7"); e("s_lshl_b32 s63, s19, 6"); e("s_add_u32 s62, s62, s63")
    e("v_lshlrev_b32 v12, 10, v8"); e("v_lshl_add_u32 v12, v10, 3, v12"); e("v_add_u32 v12, s62, v12")
    e(f"v_add_u32 v12, {Q}, v12")
    e("s_mov_b32 s62, 0x3eb8aa3b")
    for i in range(16): e(f"v_mul_f32 v{ACC+i}, s62, v{ACC+i}")
    for g in range(4):
        e(f"v_cvt_pk_bf16_f32 v{TA+2*g}, v{ACC+4*g}, v{ACC+4*g+1}")
        e(f"v_cvt_pk_bf16_f32 v{TA+2*g+1}, v{ACC+4*g+2}, v{ACC+4*g+3}")
        e(f"buffer_store_dwordx2 v[{TA+2*g}:{TA+2*g+1}], v12, s[36:39], 0 offen offset:{g*16}")
    e("s_branch K1_END")
    lab("K1_KV")
    e("s_cmp_lg_u32 s19, 0"); e("s_cbranch_scc1 K1_END")
    e("v_lshrrev_b32 v12, 5, v1"); e("v_lshlrev_b32 v11, 8, v12")
    e("v_bfe_u32 v12, v1, 2, 2"); e("v_lshl_add_u32 v11, v12, 5, v11")
    e("v_bfe_u32 v12, v1, 4, 1"); e("v_lshl_add_u32 v11, v12, 14, v11")
    e("v_and_b32 v12, 3, v1"); e("v_lshl_add_u32 v11, v12, 3, v11")
    e(f"v_add_u32 v11, {WL}, v11")
    for i in range(16): e(f"v_mov_b32 v{ACC+i}, 0")
    for k0 in range(0, 32, 4):
        for kk in range(k0, k0 + 4):
            a = TA + 4 * (kk - k0)
            e(f"ds_read_b64_tr_b16 v[{a}:{a+1}], v11 offset:{kk*512}")
            e(f"ds_read_b64_tr_b16 v[{a+2}:{a+3}], v11 offset:{kk*512+128}")
            vB(kk, TB + 4 * (kk - k0), True)
        e("s_waitcnt lgkmcnt(0)")
        for kk in range(k0, k0 + 4):
            a = TA + 4 * (kk - k0); b = TB + 4 * (kk - k0)
            e(f"v_mfma_f32_32x32x16_bf16 v[{ACC}:{ACC+15}], v[{a}:{a+3}], v[{b}:{b+3}], v[{ACC}:{ACC+15}]")
    e("s_nop 15"); e("s_nop 3")
    e("v_lshlrev_b32 v12, 5, v8"); e("v_lshl_add_u32 v12, v10, 3, v12"); e(f"v_add_u32 v12, {KB}, v12")
    for g in range(2):
        e(f"v_cvt_pk_bf16_f32 v{TA+2*g}, v{ACC+4*g}, v{ACC+4*g+1}")
        e(f"v_cvt_pk_bf16_f32 v{TA+2*g+1}, v{ACC+4*g+2}, v{ACC+4*g+3}")
        e(f"buffer_store_dwordx2 v[{TA+2*g}:{TA+2*g+1}], v12, s[36:39], 0 offen offset:{g*16}")
    e("v_lshrrev_b32 v12, 4, v8"); e("v_lshlrev_b32 v12, 9, v12")
    e("v_bfe_u32 v13, v8, 2, 1"); e("v_lshl_add_u32 v12, v13, 8, v12")
    e("v_bfe_u32 v13, v8, 3, 1"); e("v_lshl_add_u32 v12, v13, 3, v12")
    e("v_and_b32 v13, 3, v8"); e("v_lshl_add_u32 v12, v13, 1, v12")
    e("v_lshl_add_u32 v12, v10, 6, v12"); e(f"v_add_u32 v12, {VT}, v12")
    for g in range(2, 4):
        for i in range(4):
            e(f"v_cvt_pk_bf16_f32 v13, v{ACC+4*g+i}, v{ACC+4*g+i}")
            e(f"buffer_store_short v13, v12, s[36:39], 0 offen offset:{(8*(g-2)+i)*16}")
    lab("K1_END")
    e("s_endpgm")

def k3():
    header("out_kernel")
    e("s_cmp_ge_u32 s2, 256"); e("s_cbranch_scc1 K3_END")
    e("s_load_dwordx2 s[4:5], s[0:1], 0"); e("s_load_dwordx2 s[6:7], s[0:1], 32")
    e("s_load_dwordx2 s[8:9], s[0:1], 80"); e("s_load_dwordx2 s[14:15], s[0:1], 96")
    e("s_and_b32 s20, s2, 31"); e("s_lshr_b32 s21, s2, 5")
    e("v_and_b32 v1, 63, v0"); e("v_lshrrev_b32 v2, 6, v0"); e("s_nop 0")
    e("v_readfirstlane_b32 s22, v2")
    e("s_waitcnt lgkmcnt(0)")
    e(f"s_add_u32 s16, s14, {SEL}"); e("s_addc_u32 s17, s15, 0")
    e("s_load_dwordx4 s[48:51], s[16:17], 0")
    srd(24, 4, 5, 0x200000); srd(28, 6, 7, 0x80000); srd(32, 8, 9, 0x200000); srd(36, 14, 15, WS_BYTES)
    e("s_and_b32 s23, s22, 1"); e("s_lshr_b32 s19, s22, 1")
    stage_w64(28, 22, 21, 2)
    ACC, TA, BB = 16, 32, 64
    e("v_and_b32 v8, 31, v1"); e("s_lshl_b32 s62, s23, 5"); e("s_lshl_b32 s63, s20, 6"); e("s_add_u32 s62, s62, s63")
    e("v_add_u32 v8, s62, v8")
    e("v_lshrrev_b32 v10, 5, v1")
    e("v_lshlrev_b32 v9, 10, v8"); e("v_lshl_add_u32 v9, v10, 4, v9"); e(f"v_add_u32 v9, {O}, v9")
    for kk in range(32):
        e(f"buffer_load_dwordx4 v[{BB+4*kk}:{BB+4*kk+3}], v9, s[36:39], 0 offen offset:{kk*32}")
    e("s_lshl_b32 s62, s21, 7"); e("s_lshl_b32 s63, s19, 6"); e("s_add_u32 s62, s62, s63")
    e("v_lshlrev_b32 v12, 10, v8"); e("v_lshl_add_u32 v12, v10, 3, v12"); e("v_add_u32 v12, s62, v12")
    XX, XXN = 192, 200
    for g in range(4):
        e(f"buffer_load_dwordx2 v[{XX+2*g}:{XX+2*g+1}], v12, s[24:27], 0 offen offset:{g*16}")
        e(f"buffer_load_dwordx2 v[{XXN+2*g}:{XXN+2*g+1}], v12, s[36:39], 0 offen offset:{g*16}")
    e("s_lshl_b32 s62, s19, 6")
    addrA_w64(11, 62, 13)
    e("s_waitcnt vmcnt(0)"); e("s_barrier")
    gemm_w64(ACC, 11, lambda kk, t, issue: BB + 4 * kk, TA, 0)
    e("s_nop 15"); e("s_nop 3")
    UP = 208
    for g in range(4):
        for p in range(2):
            e(f"v_lshlrev_b32 v{UP+4*g+2*p}, 16, v{XXN+2*g+p}"); e(f"v_and_b32 v{UP+4*g+2*p+1}, 0xffff0000, v{XXN+2*g+p}")
    e("s_waitcnt lgkmcnt(0)")
    for j in range(2):
        e(f"v_cmp_eq_u32 vcc, s{48+j}, v8"); e("s_and_saveexec_b64 s[62:63], vcc"); e(f"s_cbranch_execz K3_NOMOE{j}")
        e("s_lshl_b32 s60, s21, 8"); e("s_lshl_b32 s61, s19, 7"); e("s_add_u32 s60, s60, s61")
        e(f"v_lshlrev_b32 v13, 4, v10"); e("v_add_u32 v13, s60, v13"); e(f"v_add_u32 v13, {YP + j*2048}, v13")
        for i in range(16): e(f"v_mov_b32 v{TA+i}, 0")
        for p0 in range(0, NMOE, 8):
            n = min(8, NMOE - p0)
            for q in range(n):
                for g in range(4):
                    e(f"buffer_load_dwordx4 v[{BB+16*q+4*g}:{BB+16*q+4*g+3}], v13, s[36:39], 0 offen offset:{g*32}")
                e("v_add_u32 v13, 4096, v13")
            e("s_waitcnt vmcnt(0)")
            for q in range(n):
                for i in range(16): e(f"v_add_f32 v{TA+i}, v{TA+i}, v{BB+16*q+i}")
        for i in range(16):
            e(f"v_cvt_pk_bf16_f32 v{TA+i}, v{TA+i}, v{TA+i}"); e(f"v_lshlrev_b32 v{TA+i}, 16, v{TA+i}")
            e(f"v_mul_f32 v{TA+i}, s{50+j}, v{TA+i}")
            e(f"v_cvt_pk_bf16_f32 v{TA+i}, v{TA+i}, v{TA+i}"); e(f"v_lshlrev_b32 v{TA+i}, 16, v{TA+i}")
            e(f"v_add_f32 v{UP+i}, v{UP+i}, v{TA+i}")
            e(f"v_cvt_pk_bf16_f32 v{UP+i}, v{UP+i}, v{UP+i}"); e(f"v_lshlrev_b32 v{UP+i}, 16, v{UP+i}")
        lab(f"K3_NOMOE{j}")
        e("s_mov_b64 exec, s[62:63]")
    for g in range(4):
        for p in range(2):
            a0, a1 = ACC + 4 * g + 2 * p, ACC + 4 * g + 2 * p + 1
            e(f"v_cvt_pk_bf16_f32 v13, v{a0}, v{a1}")
            e(f"v_lshlrev_b32 v{a0}, 16, v13"); e(f"v_and_b32 v{a1}, 0xffff0000, v13")
            e(f"v_lshlrev_b32 v13, 16, v{XX+2*g+p}"); e(f"v_add_f32 v{a0}, v{a0}, v13")
            e(f"v_and_b32 v13, 0xffff0000, v{XX+2*g+p}"); e(f"v_add_f32 v{a1}, v{a1}, v13")
            e(f"v_cvt_pk_bf16_f32 v13, v{a0}, v{a1}")
            e(f"v_lshlrev_b32 v{a0}, 16, v13"); e(f"v_and_b32 v{a1}, 0xffff0000, v13")
            e(f"v_add_f32 v{a0}, v{a0}, v{UP+4*g+2*p}"); e(f"v_add_f32 v{a1}, v{a1}, v{UP+4*g+2*p+1}")
            e(f"v_cvt_pk_bf16_f32 v{TA+2*g+p}, v{a0}, v{a1}")
        e(f"buffer_store_dwordx2 v[{TA+2*g}:{TA+2*g+1}], v12, s[32:35], 0 offen offset:{g*16}")
    lab("K3_END")
    e("s_endpgm")

from k2 import k2, K2_LDS, K2_VGPR
def main():
    k1(); k2(L, e, lab, srd, header); k3()
    body = "\n".join(L)
    top = open(f"cdna_kernels/{NAME}.s.ref").read().split("; Override launch")[0]
    out = top
    out += f"; @launch kernel=prep_kernel grid=(288,1,1) block=(256,1,1) lds={K1_LDS}\n"
    out += f"; @launch kernel=attn_kernel grid=({256+NMOE},1,1) block=(512,1,1) lds={K2_LDS}\n"
    out += f"; @launch kernel=out_kernel grid=(256,1,1) block=(256,1,1) lds={K1_LDS}\n"
    out += '.amdgcn_target "amdgcn-amd-amdhsa--gfx950"\n.text\n' + body + "\n"
    out += kd("prep_kernel", 192) + "\n" + kd("attn_kernel", K2_VGPR) + "\n" + kd("out_kernel", 224) + "\n"
    open(f"cdna_kernels/{NAME}.s", "w").write(out)
main()
```

```python
XN, Q, KB, VT, R, O, YP, SEL = 0, 0x200000, 0x400000, 0x410000, 0x420000, 0x500000, 0x700000, 0x740000
WS_BYTES = 0x800000
NMOE = 43
K2_LDS = 135168
K2_VGPR = 128
def k2(L, e, lab, srd, header):
    header("attn_kernel")
    e(f"s_cmp_ge_u32 s2, {256+NMOE}"); e("s_cbranch_scc1 K2_END")
    e("s_load_dwordx2 s[14:15], s[0:1], 96")
    e("s_load_dwordx4 s[4:7], s[0:1], 56"); e("s_load_dwordx2 s[8:9], s[0:1], 72")
    e("v_and_b32 v1, 63, v0"); e("v_lshrrev_b32 v2, 6, v0"); e("s_nop 0")
    e("v_readfirstlane_b32 s22, v2")
    e("s_mov_b32 s64, 0x0000ffff"); e("s_mov_b32 s65, 0x0000ffff")
    e("s_waitcnt lgkmcnt(0)")
    srd(36, 14, 15, WS_BYTES)
    e(f"s_cmp_lt_u32 s2, {NMOE}"); e("s_cbranch_scc1 K2_MOE")
    e(f"s_sub_u32 s20, s2, {NMOE}")
    QF, KA, KBb, VA, VB, NEGM, SA, SB, P, OA, T = 4, 8, 12, 16, 24, 32, 48, 64, 80, 88, 104
    e("v_lshlrev_b32 v2, 4, v1")
    e(f"s_lshl_b32 s61, s22, 13"); e(f"s_add_u32 s60, s61, {KB}")
    for j in range(8):
        e("s_mov_b32 m0, s61"); e("s_nop 0")
        e("buffer_load_dwordx4 v2, s[36:39], s60 offen lds")
        e("s_add_u32 s60, s60, 1024"); e("s_add_u32 s61, s61, 1024")
    e("s_lshl_b32 s60, s20, 3"); e("s_and_b32 s67, s22, 7"); e("s_add_u32 s60, s60, s67"); e("s_lshr_b32 s68, s22, 3"); e("s_lshl_b32 s69, s68, 15")
    e("v_and_b32 v2, 31, v1"); e("v_lshrrev_b32 v3, 5, v1")
    e("v_lshlrev_b32 v120, 5, v2"); e("v_lshl_add_u32 v120, v3, 4, v120")
    e("s_lshl_b32 s61, s60, 10"); e(f"s_add_u32 s61, s61, {Q}")
    e(f"buffer_load_dwordx4 v[{QF}:{QF+3}], v120, s[36:39], s61 offen")
    e("v_and_b32 v121, 15, v1"); e("v_lshlrev_b32 v121, 4, v121"); e("v_lshl_add_u32 v121, v3, 8, v121")
    e("v_add_u32 v121, 0x10000, v121")
    e("v_cmp_eq_u32 vcc, 16, v2"); e("v_mov_b32 v4, 0"); e("v_mov_b32 v122, 0x3f803f80"); e("s_nop 1")
    e("v_cndmask_b32 v122, 0, v122, vcc")
    for i in range(16): e(f"v_mov_b32 v{VA+i}, v122")
    for i in range(16): e(f"v_mov_b32 v{OA+i}, 0")
    for i in range(16): e(f"v_mov_b32 v{NEGM+i}, 0")
    e("s_waitcnt vmcnt(0)"); e("s_barrier")
    e("v_add_u32 v120, s69, v120"); e("v_add_u32 v121, s69, v121")
    e(f"ds_read_b128 v[{KA}:{KA+3}], v120"); e(f"ds_read_b128 v[{KBb}:{KBb+3}], v120 offset:1024")
    e("s_mov_b64 exec, s[64:65]")
    e(f"ds_read_b128 v[{VA}:{VA+3}], v121"); e(f"ds_read_b128 v[{VA+4}:{VA+7}], v121 offset:512")
    e("s_mov_b64 exec, -1")
    e("s_waitcnt lgkmcnt(0)")
    e(f"v_mfma_f32_32x32x16_bf16 v[{SA}:{SA+15}], v[{KA}:{KA+3}], v[{QF}:{QF+3}], v[{NEGM}:{NEGM+15}]")
    e("s_nop 15"); e("s_nop 3")
    def maxtree(S, d):
        e(f"v_max3_f32 v{d}, v{S}, v{S+1}, v{S+2}")
        for i in range(3, 15, 2): e(f"v_max3_f32 v{d}, v{d}, v{S+i}, v{S+i+1}")
        e(f"v_max_f32 v{d}, v{d}, v{S+15}")
    def bothhalves(d, t):
        e(f"v_mov_b32 v{t}, v{d}"); e("s_nop 1"); e(f"v_permlane32_swap_b32 v{d}, v{t}"); e("s_nop 1")
        e(f"v_max_f32 v{d}, v{d}, v{t}")
    maxtree(SA, T); bothhalves(T, T + 1)
    for i in range(16): e(f"v_sub_f32 v{SA+i}, v{SA+i}, v{T}")
    for i in range(16): e(f"v_sub_f32 v{NEGM+i}, 0, v{T}")
    e("v_add_u32 v120, 2048, v120")
    e("v_add_u32 v121, 1024, v121")
    slow = []
    def it(tag, Sc, Sn, Kc, Kn, Vc, Vn, koff, voff, last=False):
        if not last:
            e("s_waitcnt lgkmcnt(2)")
            e(f"v_mfma_f32_32x32x16_bf16 v[{Sn}:{Sn+15}], v[{Kn}:{Kn+3}], v[{QF}:{QF+3}], v[{NEGM}:{NEGM+15}]")
            e(f"ds_read_b128 v[{Kc}:{Kc+3}], v120 offset:{koff}")
        for i in range(16): e(f"v_exp_f32 v{Sc+i}, v{Sc+i}")
        e("s_nop 0")
        for i in range(8): e(f"v_cvt_pk_bf16_f32 v{P+i}, v{Sc+2*i}, v{Sc+2*i+1}")
        e("s_waitcnt lgkmcnt(1)" if not last else "s_waitcnt lgkmcnt(0)"); e("s_nop 0")
        e(f"v_mfma_f32_32x32x16_bf16 v[{OA}:{OA+15}], v[{Vc}:{Vc+3}], v[{P}:{P+3}], v[{OA}:{OA+15}]")
        e(f"v_mfma_f32_32x32x16_bf16 v[{OA}:{OA+15}], v[{Vc+4}:{Vc+7}], v[{P+4}:{P+7}], v[{OA}:{OA+15}]")
        if last: return
        e("s_mov_b64 exec, s[64:65]")
        e(f"ds_read_b128 v[{Vn}:{Vn+3}], v121 offset:{voff}"); e(f"ds_read_b128 v[{Vn+4}:{Vn+7}], v121 offset:{voff+512}")
        e("s_mov_b64 exec, -1")
        maxtree(Sn, T)
        e(f"v_cmp_lt_f32 vcc, 0x42200000, v{T}"); e("s_nop 1")
        e(f"s_cbranch_vccnz K2_SLOW{tag}")
        lab(f"K2_BACK{tag}")
        slow.append((tag, Sn))
    e("s_mov_b32 s66, 0")
    lab("K2_LOOP")
    it("A", SA, SB, KA, KBb, VA, VB, 0, 0)
    it("B", SB, SA, KBb, KA, VB, VA, 1024, 1024)
    e("v_add_u32 v120, 2048, v120"); e("v_add_u32 v121, 2048, v121")
    e("s_add_u32 s66, s66, 1"); e("s_cmp_lt_u32 s66, 15"); e("s_cbranch_scc1 K2_LOOP")
    it("C", SA, SB, KA, KBb, VA, VB, 0, 0)
    it("D", SB, SA, KBb, KA, VB, VA, 0, 0, last=True)
    e("s_nop 15"); e("s_nop 3")
    e("s_barrier")
    e("s_lshl_b32 s67, s67, 13"); e("v_lshlrev_b32 v123, 4, v1"); e("v_add_u32 v123, s67, v123")
    e("s_cmp_eq_u32 s68, 0"); e("s_cbranch_scc1 K2_LOWER")
    for i in range(4): e(f"ds_write_b128 v123, v[{OA+4*i}:{OA+4*i+3}] offset:{i*1024}")
    e(f"ds_write_b32 v123, v{NEGM} offset:4096")
    e("s_waitcnt lgkmcnt(0)"); e("s_barrier"); e("s_endpgm")
    lab("K2_LOWER")
    e("s_barrier")
    for i in range(4): e(f"ds_read_b128 v[{SA+4*i}:{SA+4*i+3}], v123 offset:{i*1024}")
    e(f"ds_read_b32 v{T}, v123 offset:4096"); e("s_waitcnt lgkmcnt(0)")
    e(f"v_min_f32 v{T+1}, v{T}, v{NEGM}")
    e(f"v_sub_f32 v{T}, v{T+1}, v{T}"); e(f"v_sub_f32 v{T+1}, v{T+1}, v{NEGM}")
    e(f"v_exp_f32 v{T}, v{T}"); e(f"v_exp_f32 v{T+1}, v{T+1}"); e("s_nop 0")
    for i in range(16):
        e(f"v_mul_f32 v{OA+i}, v{OA+i}, v{T+1}"); e(f"v_fmac_f32 v{OA+i}, v{SA+i}, v{T}")
    e(f"v_mov_b32 v{T}, v{OA+8}"); e(f"v_mov_b32 v{T+1}, v{OA+8}"); e("s_nop 1")
    e(f"v_permlane32_swap_b32 v{T}, v{T+1}"); e("s_nop 1")
    e(f"v_rcp_f32 v{T}, v{T}"); e("s_nop 0")
    for i in range(8): e(f"v_mul_f32 v{OA+i}, v{OA+i}, v{T}")
    for i in range(4): e(f"v_cvt_pk_bf16_f32 v{P+i}, v{OA+2*i}, v{OA+2*i+1}")
    e("v_lshlrev_b32 v2, 5, v2"); e("v_lshl_add_u32 v2, v3, 3, v2")
    e("s_lshl_b32 s61, s60, 10"); e(f"s_add_u32 s61, s61, {O}")
    e(f"buffer_store_dwordx2 v[{P}:{P+1}], v2, s[36:39], s61 offen")
    e(f"buffer_store_dwordx2 v[{P+2}:{P+3}], v2, s[36:39], s61 offen offset:16")
    e("s_endpgm")
    for tag, Sn in slow:
        lab(f"K2_SLOW{tag}")
        e("s_nop 15"); e("s_nop 15")
        bothhalves(T, T + 1)
        e(f"v_max_f32 v{T}, 0, v{T}")
        for i in range(16): e(f"v_sub_f32 v{Sn+i}, v{Sn+i}, v{T}")
        for i in range(16): e(f"v_sub_f32 v{NEGM+i}, v{NEGM+i}, v{T}")
        e(f"v_sub_f32 v{T}, 0, v{T}"); e(f"v_exp_f32 v{T}, v{T}"); e("s_nop 0")
        for i in range(16): e(f"v_mul_f32 v{OA+i}, v{OA+i}, v{T}")
        e("s_nop 3")
        e(f"s_branch K2_BACK{tag}")
    lab("K2_MOE")
    e("s_cmp_lt_u32 s22, 8"); e("s_cbranch_scc1 K2_MOE_GO")
    e("s_barrier"); e("s_barrier"); e("s_barrier"); e("s_barrier"); e("s_endpgm")
    lab("K2_MOE_GO")
    srd(24, 4, 5, 512 * 2752); srd(28, 6, 7, 512 * 2752); srd(32, 8, 9, 1376 * 1024)
    e("v_lshrrev_b32 v2, 2, v1"); e("v_mul_u32_u24 v2, 2752, v2"); e("v_and_b32 v3, 3, v1"); e("v_lshl_add_u32 v2, v3, 4, v2")
    e("v_lshlrev_b32 v3, 4, v1")
    e("s_lshl_b32 s60, s2, 6")
    e(f"s_mul_i32 s61, s22, {4*16*2752}"); e("s_add_u32 s60, s60, s61")
    e("s_lshl_b32 s61, s22, 12")
    e("s_lshl_b32 s62, s2, 15"); e("s_add_u32 s62, s62, s61")
    for j in range(4):
        e("s_mov_b32 m0, s61"); e("s_nop 0"); e("buffer_load_dwordx4 v2, s[24:27], s60 offen lds")
        e("s_add_u32 s63, s61, 32768"); e("s_mov_b32 m0, s63"); e("s_nop 0"); e("buffer_load_dwordx4 v2, s[28:31], s60 offen lds")
        e("s_add_u32 s63, s61, 65536"); e("s_mov_b32 m0, s63"); e("s_nop 0"); e("buffer_load_dwordx4 v3, s[32:35], s62 offen lds")
        e(f"s_add_u32 s60, s60, {16*2752}"); e("s_add_u32 s61, s61, 1024"); e("s_add_u32 s62, s62, 1024")
    RV = 8
    e(f"v_add_u32 v4, {R}, v3")
    e("s_movk_i32 s47, 4096")
    for i in range(8): e(f"buffer_load_dwordx4 v[{RV+4*i}:{RV+4*i+3}], v4, s[36:39], {'s47' if i>=4 else '0'} offen offset:{(i%4)*1024}")
    e("v_mov_b32 v5, 0"); e("v_mov_b32 v6, 0")
    e("v_lshlrev_b32 v7, 2, v1"); e("v_sub_u32 v7, 2047, v7")
    e("s_waitcnt vmcnt(0)")
    for i in range(32):
        v = RV + i
        e(f"v_ashrrev_i32 v40, 31, v{v}"); e(f"v_or_b32 v40, 0x80000000, v40"); e(f"v_xor_b32 v40, v40, v{v}")
        e("v_and_b32 v40, 0xffff0000, v40")
        e(f"v_sub_u32 v41, v7, {(i//4)*256 + (i%4)}" if False else f"v_subrev_u32 v41, {(i//4)*256 + (i%4)}, v7")
        e("v_or_b32 v40, v40, v41")
        e("v_min_u32 v41, v5, v40"); e("v_max_u32 v6, v6, v41"); e("v_max_u32 v5, v5, v40")
    def wavemax(v, t):
        e(f"v_mov_b32 v{t}, v{v}")
        for m in ["quad_perm:[1,0,3,2]", "quad_perm:[2,3,0,1]", "row_half_mirror", "row_mirror"]:
            e("s_nop 1"); e(f"v_max_u32_dpp v{t}, v{t}, v{t} {m} row_mask:0xf bank_mask:0xf")
        e(f"ds_swizzle_b32 v{t+1}, v{t} offset:0x401F"); e("s_waitcnt lgkmcnt(0)"); e(f"v_max_u32 v{t}, v{t}, v{t+1}")
        e(f"v_mov_b32 v{t+1}, v{t}"); e("s_nop 1"); e(f"v_permlane32_swap_b32 v{t}, v{t+1}"); e("s_nop 1")
        e(f"v_max_u32 v{t}, v{t}, v{t+1}")
    wavemax(5, 42)
    e("v_cmp_eq_u32 vcc, v5, v42"); e("s_nop 1"); e("v_cndmask_b32 v5, v5, v6, vcc")
    wavemax(5, 44)
    e("s_nop 1"); e("v_readfirstlane_b32 s40, v42"); e("v_readfirstlane_b32 s41, v44"); e("s_nop 3")
    e("s_and_b32 s42, s40, 0x7ff"); e("s_sub_u32 s42, 2047, s42")
    e("s_and_b32 s43, s41, 0x7ff"); e("s_sub_u32 s43, 2047, s43")
    for j in range(2):
        e(f"s_and_b32 s44, s{40+j}, 0xffff0000"); e("v_mov_b32 v40, s44")
        e("v_ashrrev_i32 v41, 31, v40"); e("v_not_b32 v41, v41"); e("v_or_b32 v41, 0x80000000, v41")
        e("v_xor_b32 v40, v40, v41"); e("v_and_b32 v40, 0xffff0000, v40")
        e("v_mul_f32 v40, 0xbfb8aa3b, v40"); e("v_exp_f32 v40, v40"); e("s_nop 0"); e("v_add_f32 v40, 1.0, v40")
        e("v_rcp_f32 v40, v40"); e("s_nop 0"); e("v_cvt_pk_bf16_f32 v40, v40, v40"); e(f"v_lshlrev_b32 v{46+j}, 16, v40")
    e("s_cmp_lg_u32 s2, 0"); e("s_cbranch_scc1 K2_NOSEL"); e("s_cmp_lg_u32 s22, 0"); e("s_cbranch_scc1 K2_NOSEL")
    e("v_mov_b32 v44, s42"); e("v_mov_b32 v45, s43"); e(f"v_mov_b32 v40, {SEL}")
    e("v_cmp_eq_u32 vcc, 0, v1"); e("s_and_saveexec_b64 s[62:63], vcc")
    e("buffer_store_dwordx4 v[44:47], v40, s[36:39], 0 offen"); e("s_mov_b64 exec, s[62:63]")
    lab("K2_NOSEL")
    e("s_cmp_ge_u32 s22, 4"); e("s_cbranch_scc1 K2_MOE_W2")
    XB, ACC, TA = 48, 8, 24
    e("s_and_b32 s44, s22, 1"); e("s_lshr_b32 s45, s22, 1")
    for i in range(64): e(f"v_mov_b32 v{XB+i}, 0")
    e("v_and_b32 v2, 31, v1"); e("v_lshrrev_b32 v3, 5, v1")
    e("v_mov_b32 v4, s42"); e("v_mov_b32 v5, s43"); e("v_cmp_eq_u32 vcc, 1, v2"); e("s_nop 1"); e("v_cndmask_b32 v4, v4, v5, vcc")
    e("v_lshlrev_b32 v4, 10, v4"); e("v_lshl_add_u32 v4, v3, 4, v4"); e("s_lshl_b32 s46, s45, 9"); e("v_add_u32 v4, s46, v4")
    e("v_cmp_gt_u32 vcc, 2, v2"); e("s_and_saveexec_b64 s[62:63], vcc")
    for kk in range(16): e(f"buffer_load_dwordx4 v[{XB+4*kk}:{XB+4*kk+3}], v4, s[36:39], 0 offen offset:{kk*32}")
    e("s_mov_b64 exec, s[62:63]")
    e("v_lshlrev_b32 v6, 9, v3"); e("v_bfe_u32 v7, v1, 2, 2"); e("v_lshl_add_u32 v6, v7, 6, v6")
    e("v_bfe_u32 v7, v1, 4, 1"); e("v_lshl_add_u32 v6, v7, 5, v6"); e("v_and_b32 v7, 3, v1"); e("v_lshl_add_u32 v6, v7, 3, v6")
    e("s_lshl_b32 s46, s44, 15"); e("s_lshl_b32 s47, s45, 14"); e("s_add_u32 s46, s46, s47"); e("v_add_u32 v6, s46, v6")
    for i in range(16): e(f"v_mov_b32 v{ACC+i}, 0")
    e("s_waitcnt vmcnt(0)"); e("s_barrier")
    for k0 in range(0, 16, 4):
        for kk in range(k0, k0 + 4):
            a = TA + 4 * (kk - k0)
            e(f"ds_read_b64_tr_b16 v[{a}:{a+1}], v6 offset:{kk*1024}"); e(f"ds_read_b64_tr_b16 v[{a+2}:{a+3}], v6 offset:{kk*1024+256}")
        e("s_waitcnt lgkmcnt(0)")
        for kk in range(k0, k0 + 4):
            a = TA + 4 * (kk - k0)
            e(f"v_mfma_f32_32x32x16_bf16 v[{ACC}:{ACC+15}], v[{a}:{a+3}], v[{XB+4*kk}:{XB+4*kk+3}], v[{ACC}:{ACC+15}]")
    e("s_nop 15"); e("s_nop 3")
    e("s_lshl_b32 s46, s22, 8"); e("v_lshlrev_b32 v7, 5, v3"); e("v_lshl_add_u32 v7, v2, 2, v7"); e("v_add_u32 v7, s46, v7")
    e("v_add_u32 v7, 98304, v7")
    e("v_cmp_gt_u32 vcc, 2, v2"); e("s_and_saveexec_b64 s[62:63], vcc")
    for r in range(16): e(f"ds_write_b32 v7, v{ACC+r} offset:{(8*(r//4)+(r%4))*8}")
    e("s_mov_b64 exec, s[62:63]")
    e("s_waitcnt lgkmcnt(0)"); e("s_barrier")
    e("s_branch K2_MOE_H")
    lab("K2_MOE_W2")
    e("s_waitcnt vmcnt(0)"); e("s_barrier"); e("s_barrier")
    lab("K2_MOE_H")
    e("v_and_b32 v2, 31, v1"); e("v_lshrrev_b32 v3, 5, v1")
    e("v_lshlrev_b32 v7, 3, v2"); e("v_lshl_add_u32 v7, v3, 2, v7"); e("v_add_u32 v7, 98304, v7")
    e("ds_read_b32 v8, v7"); e("ds_read_b32 v9, v7 offset:512"); e("ds_read_b32 v10, v7 offset:256"); e("ds_read_b32 v11, v7 offset:768")
    e("s_waitcnt lgkmcnt(0)")
    e("v_add_f32 v8, v8, v9"); e("v_add_f32 v10, v10, v11")
    e("v_cvt_pk_bf16_f32 v8, v8, v10"); e("v_lshlrev_b32 v9, 16, v8"); e("v_and_b32 v10, 0xffff0000, v8")
    e("v_mul_f32 v11, 0xbfb8aa3b, v9"); e("v_exp_f32 v11, v11"); e("s_nop 0"); e("v_add_f32 v11, 1.0, v11"); e("v_rcp_f32 v11, v11"); e("s_nop 0")
    e("v_mul_f32 v9, v9, v11"); e("v_cvt_pk_bf16_f32 v9, v9, v9"); e("v_lshlrev_b32 v9, 16, v9")
    e("v_mul_f32 v9, v9, v10"); e("v_cvt_pk_bf16_f32 v9, v9, v9")
    e("v_lshlrev_b32 v7, 1, v2"); e("v_lshl_add_u32 v7, v3, 6, v7"); e("v_add_u32 v7, 99328, v7")
    e("s_cmp_lg_u32 s22, 0"); e("s_cbranch_scc1 K2_MOE_NOH")
    e("ds_write_b16 v7, v9"); e("s_waitcnt lgkmcnt(0)")
    lab("K2_MOE_NOH")
    e("s_barrier")
    HBv = 40
    for i in range(8): e(f"v_mov_b32 v{HBv+i}, 0")
    e("v_lshlrev_b32 v7, 6, v2"); e("v_lshl_add_u32 v7, v3, 4, v7"); e("v_add_u32 v7, 99328, v7")
    e("v_cmp_gt_u32 vcc, 2, v2"); e("s_and_saveexec_b64 s[62:63], vcc")
    e(f"ds_read_b128 v[{HBv}:{HBv+3}], v7"); e(f"ds_read_b128 v[{HBv+4}:{HBv+7}], v7 offset:32")
    e("s_mov_b64 exec, s[62:63]")
    e("v_lshlrev_b32 v6, 13, v3"); e("v_bfe_u32 v8, v1, 2, 2"); e("v_lshl_add_u32 v6, v8, 10, v6")
    e("v_bfe_u32 v8, v1, 4, 1"); e("v_lshl_add_u32 v6, v8, 5, v6"); e("v_and_b32 v8, 3, v1"); e("v_lshl_add_u32 v6, v8, 3, v6")
    e("s_lshl_b32 s46, s22, 7"); e("v_add_u32 v6, s46, v6"); e("v_add_u32 v6, 65536, v6")
    e("s_lshl_b32 s47, s22, 8"); e(f"s_add_u32 s46, s47, {YP}")
    e("v_lshlrev_b32 v5, 11, v2"); e("v_lshl_add_u32 v5, v3, 4, v5")
    for tl in range(2):
        for i in range(16): e(f"v_mov_b32 v{ACC+i}, 0")
        for kk in range(2):
            e(f"ds_read_b64_tr_b16 v[{TA+4*kk}:{TA+4*kk+1}], v6 offset:{kk*16384+tl*64}")
            e(f"ds_read_b64_tr_b16 v[{TA+4*kk+2}:{TA+4*kk+3}], v6 offset:{kk*16384+4096+tl*64}")
        e("s_waitcnt lgkmcnt(0)")
        for kk in range(2):
            e(f"v_mfma_f32_32x32x16_bf16 v[{ACC}:{ACC+15}], v[{TA+4*kk}:{TA+4*kk+3}], v[{HBv+4*kk}:{HBv+4*kk+3}], v[{ACC}:{ACC+15}]")
        e("s_nop 15"); e("s_nop 3")
        e("v_cmp_gt_u32 vcc, 2, v2"); e("s_and_saveexec_b64 s[62:63], vcc")
        e("v_add_u32 v4, s47, v5"); e("v_add_u32 v4, 100352, v4")
        for g in range(4): e(f"ds_write_b128 v4, v[{ACC+4*g}:{ACC+4*g+3}] offset:{tl*128+g*32}")
        e("s_mov_b64 exec, s[62:63]")
    e("s_waitcnt lgkmcnt(0)"); e("s_barrier")
    e("v_lshlrev_b32 v4, 2, v0"); e("v_add_u32 v5, 100352, v4")
    e("ds_read_b32 v6, v5"); e("ds_read_b32 v7, v5 offset:2048"); e("s_waitcnt lgkmcnt(0)")
    e(f"v_add_u32 v4, {YP}, v4")
    e("buffer_atomic_add_f32 v6, v4, s[36:39], 0 offen"); e("buffer_atomic_add_f32 v7, v4, s[36:39], 0 offen offset:2048")
    lab("K2_END")
    e("s_endpgm")
```

```python
import sys
NAME = "parallel_sum__grouped_kv_mqa__moe_arch_mod__prompt"
XN, Q, KB, VT, R, O, YP, SEL = 0, 0x200000, 0x400000, 0x410000, 0x420000, 0x500000, 0x700000, 0x740000
WS_BYTES = 0x800000
NMOE = 43
L = []
def e(s=""): L.append("    " + s if s and not s.endswith(":") else s)
def lab(s): L.append(s + ":")

def srd(d, lo, hi, nbytes):
    e(f"s_mov_b32 s{d}, s{lo}"); e(f"s_and_b32 s{d+1}, s{hi}, 0xffff")
    e(f"s_mov_b32 s{d+2}, {nbytes:#x}"); e(f"s_mov_b32 s{d+3}, 0x00020000")

def kd(name, vgpr, sgpr=102):
    acc = (vgpr + 3) // 4 * 4
    return f""".section .rodata,"a"
.p2align 6
.amdhsa_kernel {name}
  .amdhsa_next_free_vgpr {vgpr}
  .amdhsa_next_free_sgpr {sgpr}
  .amdhsa_accum_offset {acc}
  .amdhsa_group_segment_fixed_size 0
  .amdhsa_kernarg_size 104
  .amdhsa_user_sgpr_count 2
  .amdhsa_user_sgpr_kernarg_segment_ptr 1
  .amdhsa_system_sgpr_workgroup_id_x 1
.end_amdhsa_kernel
.text"""

def header(name):
    L.append(f".globl {name}\n.p2align 8\n.type {name},@function\n{name}:")

XNL = 0; XROW = 1040; WL = 64 * XROW
K1_LDS = WL + 65536

def stage_w64(srdW, s_w, s_cb, vtmp):
    e(f"v_lshrrev_b32 v{vtmp}, 3, v1"); e(f"v_lshlrev_b32 v{vtmp}, 10, v{vtmp}")
    e(f"v_and_b32 v{vtmp+1}, 7, v1"); e(f"v_lshlrev_b32 v{vtmp+1}, 4, v{vtmp+1}")
    e(f"v_add_u32 v{vtmp}, v{vtmp}, v{vtmp+1}")
    e(f"s_lshl_b32 s60, s{s_w}, 17")
    e(f"s_lshl_b32 s61, s{s_cb}, 7"); e("s_add_u32 s60, s60, s61")
    e(f"s_lshl_b32 s61, s{s_w}, 14"); e(f"s_add_u32 s61, s61, {WL}")
    for j in range(16):
        e("s_mov_b32 m0, s61"); e("s_nop 0")
        e(f"buffer_load_dwordx4 v{vtmp}, s[{srdW}:{srdW+3}], s60 offen lds")
        e("s_add_u32 s60, s60, 8192"); e("s_add_u32 s61, s61, 1024")

def gemm_w64(acc, vA, vB_getter, ta, tb):
    for i in range(16): e(f"v_mov_b32 v{acc+i}, 0")
    for k0 in range(0, 32, 4):
        for kk in range(k0, k0 + 4):
            a = ta + 4 * (kk - k0)
            e(f"ds_read_b64_tr_b16 v[{a}:{a+1}], v{vA} offset:{kk*2048}")
            e(f"ds_read_b64_tr_b16 v[{a+2}:{a+3}], v{vA} offset:{kk*2048+512}")
            vB_getter(kk, tb + 4 * (kk - k0), True)
        e("s_waitcnt lgkmcnt(0)")
        for kk in range(k0, k0 + 4):
            a = ta + 4 * (kk - k0)
            b = vB_getter(kk, tb + 4 * (kk - k0), False)
            e(f"v_mfma_f32_32x32x16_bf16 v[{acc}:{acc+15}], v[{a}:{a+3}], v[{b}:{b+3}], v[{acc}:{acc+15}]")

def addrA_w64(vA, s_wc_times64, t):
    e(f"v_lshrrev_b32 v{t}, 5, v1"); e(f"v_lshlrev_b32 v{vA}, 10, v{t}")
    e(f"v_bfe_u32 v{t}, v1, 2, 2"); e(f"v_lshl_add_u32 v{vA}, v{t}, 7, v{vA}")
    e(f"v_bfe_u32 v{t}, v1, 4, 1"); e(f"v_lshl_add_u32 v{vA}, v{t}, 5, v{vA}")
    e(f"v_and_b32 v{t}, 3, v1"); e(f"v_lshl_add_u32 v{vA}, v{t}, 3, v{vA}")
    e(f"v_add_u32 v{vA}, s{s_wc_times64}, v{vA}")
    e(f"v_add_u32 v{vA}, {WL}, v{vA}")

def k1():
    header("prep_kernel")
    e("s_cmp_ge_u32 s2, 288"); e("s_cbranch_scc1 K1_END")
    e("s_load_dwordx2 s[4:5], s[0:1], 0"); e("s_load_dwordx2 s[6:7], s[0:1], 8")
    e("s_load_dwordx4 s[8:11], s[0:1], 16"); e("s_load_dwordx2 s[12:13], s[0:1], 48")
    e("s_load_dwordx2 s[14:15], s[0:1], 96")
    e("s_and_b32 s20, s2, 31"); e("s_lshr_b32 s21, s2, 5")
    e("v_and_b32 v1, 63, v0"); e("v_lshrrev_b32 v2, 6, v0"); e("s_nop 0")
    e("v_readfirstlane_b32 s22, v2")
    e("s_waitcnt lgkmcnt(0)")
    srd(24, 4, 5, 0x200000); srd(28, 6, 7, 0x80000); srd(32, 8, 9, 0x4000); srd(44, 10, 11, 0x4000)
    srd(36, 14, 15, WS_BYTES); srd(40, 12, 13, 0x400)
    e("s_and_b32 s23, s22, 1"); e("s_lshr_b32 s19, s22, 1")
    e("s_cmp_lg_u32 s2, 0"); e("s_cbranch_scc1 K1_NOZ"); e("s_cmp_lg_u32 s22, 0"); e("s_cbranch_scc1 K1_NOZ")
    for i in range(4): e(f"v_mov_b32 v{4+i}, 0")
    e(f"v_lshlrev_b32 v2, 4, v1"); e(f"v_add_u32 v2, {YP}, v2")
    for i in range(4): e(f"buffer_store_dwordx4 v[4:7], v2, s[36:39], 0 offen offset:{i*1024}")
    lab("K1_NOZ")
    e("s_cmp_eq_u32 s21, 8"); e("s_cbranch_scc1 K1_STAGE_KV")
    stage_w64(28, 22, 21, 2)
    e("s_branch K1_STAGED")
    lab("K1_STAGE_KV")
    e("v_lshlrev_b32 v2, 4, v1")
    e("s_lshl_b32 s60, s22, 12"); e(f"s_add_u32 s61, s60, {WL}")
    for j in range(4):
        e("s_mov_b32 m0, s61"); e("s_nop 0")
        e("buffer_load_dwordx4 v2, s[32:35], s60 offen lds")
        e(f"s_add_u32 s62, s61, 16384"); e("s_mov_b32 m0, s62"); e("s_nop 0")
        e("buffer_load_dwordx4 v2, s[44:47], s60 offen lds")
        e("s_add_u32 s60, s60, 1024"); e("s_add_u32 s61, s61, 1024")
    lab("K1_STAGED")
    X = 64
    e("v_lshrrev_b32 v2, 2, v1"); e("s_lshl_b32 s60, s20, 6"); e("s_lshl_b32 s61, s22, 4"); e("s_add_u32 s60, s60, s61")
    e("v_add_u32 v3, s60, v2")
    e("v_and_b32 v4, 3, v1"); e("v_lshlrev_b32 v4, 4, v4")
    e("v_lshl_add_u32 v5, v3, 10, v4")
    for j in range(16):
        e(f"buffer_load_dwordx4 v[{X+4*j}:{X+4*j+3}], v5, s[24:27], 0 offen offset:{j*64}")
    WR = 128
    e("s_cmp_lg_u32 s21, 0"); e("s_cbranch_scc1 K1_NOWR")
    for j in range(16):
        e(f"buffer_load_dwordx4 v[{WR+4*j}:{WR+4*j+3}], v4, s[40:43], 0 offen offset:{j*64}")
    lab("K1_NOWR")
    e("s_waitcnt vmcnt(0)")
    e("v_mov_b32 v6, 0"); e("v_mov_b32 v7, 0"); e("v_mov_b32 v11, 0x3f803f80")
    for i in range(64):
        e(f"v_dot2_f32_bf16 v6, v{X+i}, v11, v6"); e(f"v_dot2_f32_bf16 v7, v{X+i}, v{X+i}, v7")
    def quadsum(v):
        e("s_nop 1"); e(f"v_add_f32_dpp v{v}, v{v}, v{v} quad_perm:[1,0,3,2] row_mask:0xf bank_mask:0xf")
        e("s_nop 1"); e(f"v_add_f32_dpp v{v}, v{v}, v{v} quad_perm:[2,3,0,1] row_mask:0xf bank_mask:0xf")
    e("s_nop 4"); quadsum(6); quadsum(7)
    e("v_mul_f32 v6, 0x3b000000, v6"); e("v_mul_f32 v7, 0x3b000000, v7")
    e("v_fma_f32 v7, -v6, v6, v7"); e("v_max_f32 v7, 0, v7")
    e("v_cvt_pk_bf16_f32 v8, v6, v7")
    e("v_lshlrev_b32 v6, 16, v8"); e("v_and_b32 v7, 0xffff0000, v8")
    e("v_add_f32 v7, 0x3727c5ac, v7")
    e("v_cvt_pk_bf16_f32 v7, v7, v7"); e("v_lshlrev_b32 v7, 16, v7")
    e("v_sqrt_f32 v7, v7"); e("s_nop 0")
    e("v_cvt_pk_bf16_f32 v7, v7, v7"); e("v_lshlrev_b32 v7, 16, v7")
    e("v_rcp_f32 v7, v7"); e("s_nop 0")
    e("v_mul_f32 v6, v6, v7"); e("v_sub_f32 v6, 0, v6")
    for i in range(64):
        e(f"v_lshlrev_b32 v8, 16, v{X+i}"); e(f"v_and_b32 v9, 0xffff0000, v{X+i}")
        e("v_fma_f32 v8, v8, v7, v6"); e("v_fma_f32 v9, v9, v7, v6")
        e(f"v_cvt_pk_bf16_f32 v{X+i}, v8, v9")
    e(f"v_sub_u32 v8, v3, s60"); e("s_lshl_b32 s62, s22, 4"); e("v_add_u32 v8, s62, v8")
    e(f"v_mul_u32_u24 v8, {XROW}, v8"); e("v_add_u32 v8, v8, v4")
    for j in range(16):
        e(f"ds_write_b128 v8, v[{X+4*j}:{X+4*j+3}] offset:{j*64}")
    e("s_cmp_lg_u32 s21, 0"); e("s_cbranch_scc1 K1_NOXN")
    for j in range(16):
        e(f"buffer_store_dwordx4 v[{X+4*j}:{X+4*j+3}], v5, s[36:39], 0 offen offset:{j*64}")
    e("v_mov_b32 v9, 0")
    for i in range(64): e(f"v_dot2_f32_bf16 v9, v{X+i}, v{WR+i}, v9")
    e("s_nop 4"); quadsum(9)
    e("v_cvt_pk_bf16_f32 v9, v9, v9"); e("v_lshlrev_b32 v9, 16, v9")
    e("v_lshlrev_b32 v10, 2, v3"); e(f"v_add_u32 v10, {R}, v10")
    e("v_and_b32 v11, 3, v1"); e("v_cmp_eq_u32 vcc, 0, v11"); e("s_and_saveexec_b64 s[62:63], vcc")
    e("buffer_store_dword v9, v10, s[36:39], 0 offen")
    e("s_mov_b64 exec, s[62:63]")
    lab("K1_NOXN")
    e("s_waitcnt vmcnt(0) lgkmcnt(0)"); e("s_barrier")
    ACC, TA, TB = 16, 32, 48
    e("v_and_b32 v8, 31, v1"); e("s_lshl_b32 s62, s23, 5"); e("v_add_u32 v8, s62, v8")
    e(f"v_mul_u32_u24 v9, {XROW}, v8"); e("v_lshrrev_b32 v10, 5, v1"); e("v_lshl_add_u32 v9, v10, 4, v9")
    e("s_lshl_b32 s63, s20, 6"); e("v_add_u32 v8, s63, v8")
    def vB(kk, t, issue):
        if issue: e(f"ds_read_b128 v[{t}:{t+3}], v9 offset:{kk*32}")
        return t
    e("s_cmp_eq_u32 s21, 8"); e("s_cbranch_scc1 K1_KV")
    e("s_lshl_b32 s62, s19, 6")
    addrA_w64(11, 62, 12)
    gemm_w64(ACC, 11, vB, TA, TB)
    e("s_nop 15"); e("s_nop 3")
    e("s_lshl_b32 s62, s21, 7"); e("s_lshl_b32 s63, s19, 6"); e("s_add_u32 s62, s62, s63")
    e("v_lshlrev_b32 v12, 10, v8"); e("v_lshl_add_u32 v12, v10, 3, v12"); e("v_add_u32 v12, s62, v12")
    e(f"v_add_u32 v12, {Q}, v12")
    e("s_mov_b32 s62, 0x3eb8aa3b")
    for i in range(16): e(f"v_mul_f32 v{ACC+i}, s62, v{ACC+i}")
    for g in range(4):
        e(f"v_cvt_pk_bf16_f32 v{TA+2*g}, v{ACC+4*g}, v{ACC+4*g+1}")
        e(f"v_cvt_pk_bf16_f32 v{TA+2*g+1}, v{ACC+4*g+2}, v{ACC+4*g+3}")
        e(f"buffer_store_dwordx2 v[{TA+2*g}:{TA+2*g+1}], v12, s[36:39], 0 offen offset:{g*16}")
    e("s_branch K1_END")
    lab("K1_KV")
    e("s_cmp_lg_u32 s19, 0"); e("s_cbranch_scc1 K1_END")
    e("v_lshrrev_b32 v12, 5, v1"); e("v_lshlrev_b32 v11, 8, v12")
    e("v_bfe_u32 v12, v1, 2, 2"); e("v_lshl_add_u32 v11, v12, 5, v11")
    e("v_bfe_u32 v12, v1, 4, 1"); e("v_lshl_add_u32 v11, v12, 14, v11")
    e("v_and_b32 v12, 3, v1"); e("v_lshl_add_u32 v11, v12, 3, v11")
    e(f"v_add_u32 v11, {WL}, v11")
    for i in range(16): e(f"v_mov_b32 v{ACC+i}, 0")
    for k0 in range(0, 32, 4):
        for kk in range(k0, k0 + 4):
            a = TA + 4 * (kk - k0)
            e(f"ds_read_b64_tr_b16 v[{a}:{a+1}], v11 offset:{kk*512}")
            e(f"ds_read_b64_tr_b16 v[{a+2}:{a+3}], v11 offset:{kk*512+128}")
            vB(kk, TB + 4 * (kk - k0), True)
        e("s_waitcnt lgkmcnt(0)")
        for kk in range(k0, k0 + 4):
            a = TA + 4 * (kk - k0); b = TB + 4 * (kk - k0)
            e(f"v_mfma_f32_32x32x16_bf16 v[{ACC}:{ACC+15}], v[{a}:{a+3}], v[{b}:{b+3}], v[{ACC}:{ACC+15}]")
    e("s_nop 15"); e("s_nop 3")
    e("v_lshlrev_b32 v12, 5, v8"); e("v_lshl_add_u32 v12, v10, 3, v12"); e(f"v_add_u32 v12, {KB}, v12")
    for g in range(2):
        e(f"v_cvt_pk_bf16_f32 v{TA+2*g}, v{ACC+4*g}, v{ACC+4*g+1}")
        e(f"v_cvt_pk_bf16_f32 v{TA+2*g+1}, v{ACC+4*g+2}, v{ACC+4*g+3}")
        e(f"buffer_store_dwordx2 v[{TA+2*g}:{TA+2*g+1}], v12, s[36:39], 0 offen offset:{g*16}")
    e("v_lshrrev_b32 v12, 4, v8"); e("v_lshlrev_b32 v12, 9, v12")
    e("v_bfe_u32 v13, v8, 2, 1"); e("v_lshl_add_u32 v12, v13, 8, v12")
    e("v_bfe_u32 v13, v8, 3, 1"); e("v_lshl_add_u32 v12, v13, 3, v12")
    e("v_and_b32 v13, 3, v8"); e("v_lshl_add_u32 v12, v13, 1, v12")
    e("v_lshl_add_u32 v12, v10, 6, v12"); e(f"v_add_u32 v12, {VT}, v12")
    for g in range(2, 4):
        for i in range(4):
            e(f"v_cvt_pk_bf16_f32 v13, v{ACC+4*g+i}, v{ACC+4*g+i}")
            e(f"buffer_store_short v13, v12, s[36:39], 0 offen offset:{(8*(g-2)+i)*16}")
    lab("K1_END")
    e("s_endpgm")

def k3():
    header("out_kernel")
    e("s_cmp_ge_u32 s2, 256"); e("s_cbranch_scc1 K3_END")
    e("s_load_dwordx2 s[4:5], s[0:1], 0"); e("s_load_dwordx2 s[6:7], s[0:1], 32")
    e("s_load_dwordx2 s[8:9], s[0:1], 80"); e("s_load_dwordx2 s[14:15], s[0:1], 96")
    e("s_and_b32 s20, s2, 31"); e("s_lshr_b32 s21, s2, 5")
    e("v_and_b32 v1, 63, v0"); e("v_lshrrev_b32 v2, 6, v0"); e("s_nop 0")
    e("v_readfirstlane_b32 s22, v2")
    e("s_waitcnt lgkmcnt(0)")
    e(f"s_add_u32 s16, s14, {SEL}"); e("s_addc_u32 s17, s15, 0")
    e("s_load_dwordx4 s[48:51], s[16:17], 0")
    srd(24, 4, 5, 0x200000); srd(28, 6, 7, 0x80000); srd(32, 8, 9, 0x200000); srd(36, 14, 15, WS_BYTES)
    e("s_and_b32 s23, s22, 1"); e("s_lshr_b32 s19, s22, 1")
    stage_w64(28, 22, 21, 2)
    ACC, TA, BB = 16, 32, 64
    e("v_and_b32 v8, 31, v1"); e("s_lshl_b32 s62, s23, 5"); e("s_lshl_b32 s63, s20, 6"); e("s_add_u32 s62, s62, s63")
    e("v_add_u32 v8, s62, v8")
    e("v_lshrrev_b32 v10, 5, v1")
    e("v_lshlrev_b32 v9, 10, v8"); e("v_lshl_add_u32 v9, v10, 4, v9"); e(f"v_add_u32 v9, {O}, v9")
    for kk in range(32):
        e(f"buffer_load_dwordx4 v[{BB+4*kk}:{BB+4*kk+3}], v9, s[36:39], 0 offen offset:{kk*32}")
    e("s_lshl_b32 s62, s21, 7"); e("s_lshl_b32 s63, s19, 6"); e("s_add_u32 s62, s62, s63")
    e("v_lshlrev_b32 v12, 10, v8"); e("v_lshl_add_u32 v12, v10, 3, v12"); e("v_add_u32 v12, s62, v12")
    XX, XXN = 192, 200
    for g in range(4):
        e(f"buffer_load_dwordx2 v[{XX+2*g}:{XX+2*g+1}], v12, s[24:27], 0 offen offset:{g*16}")
        e(f"buffer_load_dwordx2 v[{XXN+2*g}:{XXN+2*g+1}], v12, s[36:39], 0 offen offset:{g*16}")
    e("s_lshl_b32 s62, s19, 6")
    addrA_w64(11, 62, 13)
    e("s_waitcnt vmcnt(0)"); e("s_barrier")
    gemm_w64(ACC, 11, lambda kk, t, issue: BB + 4 * kk, TA, 0)
    e("s_nop 15"); e("s_nop 3")
    UP = 208
    for g in range(4):
        for p in range(2):
            e(f"v_lshlrev_b32 v{UP+4*g+2*p}, 16, v{XXN+2*g+p}"); e(f"v_and_b32 v{UP+4*g+2*p+1}, 0xffff0000, v{XXN+2*g+p}")
    e("s_waitcnt lgkmcnt(0)")
    for j in range(2):
        e(f"v_cmp_eq_u32 vcc, s{48+j}, v8"); e("s_and_saveexec_b64 s[62:63], vcc"); e(f"s_cbranch_execz K3_NOMOE{j}")
        e("s_lshl_b32 s60, s21, 8"); e("s_lshl_b32 s61, s19, 7"); e("s_add_u32 s60, s60, s61")
        e(f"v_lshlrev_b32 v13, 4, v10"); e("v_add_u32 v13, s60, v13"); e(f"v_add_u32 v13, {YP + j*2048}, v13")
        for g_ in range(4):
            e(f"buffer_load_dwordx4 v[{TA+4*g_}:{TA+4*g_+3}], v13, s[36:39], 0 offen offset:{g_*32}")
        e("s_waitcnt vmcnt(0)")
        for i in range(16):
            e(f"v_cvt_pk_bf16_f32 v{TA+i}, v{TA+i}, v{TA+i}"); e(f"v_lshlrev_b32 v{TA+i}, 16, v{TA+i}")
            e(f"v_mul_f32 v{TA+i}, s{50+j}, v{TA+i}")
            e(f"v_cvt_pk_bf16_f32 v{TA+i}, v{TA+i}, v{TA+i}"); e(f"v_lshlrev_b32 v{TA+i}, 16, v{TA+i}")
            e(f"v_add_f32 v{UP+i}, v{UP+i}, v{TA+i}")
            e(f"v_cvt_pk_bf16_f32 v{UP+i}, v{UP+i}, v{UP+i}"); e(f"v_lshlrev_b32 v{UP+i}, 16, v{UP+i}")
        lab(f"K3_NOMOE{j}")
        e("s_mov_b64 exec, s[62:63]")
    for g in range(4):
        for p in range(2):
            a0, a1 = ACC + 4 * g + 2 * p, ACC + 4 * g + 2 * p + 1
            e(f"v_cvt_pk_bf16_f32 v13, v{a0}, v{a1}")
            e(f"v_lshlrev_b32 v{a0}, 16, v13"); e(f"v_and_b32 v{a1}, 0xffff0000, v13")
            e(f"v_lshlrev_b32 v13, 16, v{XX+2*g+p}"); e(f"v_add_f32 v{a0}, v{a0}, v13")
            e(f"v_and_b32 v13, 0xffff0000, v{XX+2*g+p}"); e(f"v_add_f32 v{a1}, v{a1}, v13")
            e(f"v_cvt_pk_bf16_f32 v13, v{a0}, v{a1}")
            e(f"v_lshlrev_b32 v{a0}, 16, v13"); e(f"v_and_b32 v{a1}, 0xffff0000, v13")
            e(f"v_add_f32 v{a0}, v{a0}, v{UP+4*g+2*p}"); e(f"v_add_f32 v{a1}, v{a1}, v{UP+4*g+2*p+1}")
            e(f"v_cvt_pk_bf16_f32 v{TA+2*g+p}, v{a0}, v{a1}")
        e(f"buffer_store_dwordx2 v[{TA+2*g}:{TA+2*g+1}], v12, s[32:35], 0 offen offset:{g*16}")
    lab("K3_END")
    e("s_endpgm")

from k2 import k2, K2_LDS, K2_VGPR
def main():
    k1(); k2(L, e, lab, srd, header); k3()
    body = "\n".join(L)
    top = open(f"cdna_kernels/{NAME}.s.ref").read().split("; Override launch")[0]
    out = top
    out += f"; @launch kernel=prep_kernel grid=(288,1,1) block=(256,1,1) lds={K1_LDS}\n"
    out += f"; @launch kernel=attn_kernel grid=({256+NMOE},1,1) block=(1024,1,1) lds={K2_LDS}\n"
    out += f"; @launch kernel=out_kernel grid=(256,1,1) block=(256,1,1) lds={K1_LDS}\n"
    out += '.amdgcn_target "amdgcn-amd-amdhsa--gfx950"\n.text\n' + body + "\n"
    out += kd("prep_kernel", 192) + "\n" + kd("attn_kernel", K2_VGPR) + "\n" + kd("out_kernel", 224) + "\n"
    open(f"cdna_kernels/{NAME}.s", "w").write(out)
main()
```

```python
import sys
NAME = "parallel_sum__grouped_kv_mqa__moe_arch_mod__prompt"
XN, Q, KB, VT, R, O, YP, SEL = 0, 0x200000, 0x400000, 0x410000, 0x420000, 0x500000, 0x700000, 0x740000
WS_BYTES = 0x800000
NMOE = 43
L = []
def e(s=""): L.append("    " + s if s and not s.endswith(":") else s)
def lab(s): L.append(s + ":")

def srd(d, lo, hi, nbytes):
    e(f"s_mov_b32 s{d}, s{lo}"); e(f"s_and_b32 s{d+1}, s{hi}, 0xffff")
    e(f"s_mov_b32 s{d+2}, {nbytes:#x}"); e(f"s_mov_b32 s{d+3}, 0x00020000")

def kd(name, vgpr, sgpr=102):
    acc = (vgpr + 3) // 4 * 4
    return f""".section .rodata,"a"
.p2align 6
.amdhsa_kernel {name}
  .amdhsa_next_free_vgpr {vgpr}
  .amdhsa_next_free_sgpr {sgpr}
  .amdhsa_accum_offset {acc}
  .amdhsa_group_segment_fixed_size 0
  .amdhsa_kernarg_size 104
  .amdhsa_user_sgpr_count 2
  .amdhsa_user_sgpr_kernarg_segment_ptr 1
  .amdhsa_system_sgpr_workgroup_id_x 1
.end_amdhsa_kernel
.text"""

def header(name):
    L.append(f".globl {name}\n.p2align 8\n.type {name},@function\n{name}:")

XNL = 0; XROW = 1040; WL = 64 * XROW
K1_LDS = WL + 65536

def stage_w64(srdW, s_w, s_cb, vtmp):
    e(f"v_lshrrev_b32 v{vtmp}, 3, v1"); e(f"v_lshlrev_b32 v{vtmp}, 10, v{vtmp}")
    e(f"v_and_b32 v{vtmp+1}, 7, v1"); e(f"v_lshlrev_b32 v{vtmp+1}, 4, v{vtmp+1}")
    e(f"v_add_u32 v{vtmp}, v{vtmp}, v{vtmp+1}")
    e(f"s_lshl_b32 s60, s{s_w}, 17")
    e(f"s_lshl_b32 s61, s{s_cb}, 7"); e("s_add_u32 s60, s60, s61")
    e(f"s_lshl_b32 s61, s{s_w}, 14"); e(f"s_add_u32 s61, s61, {WL}")
    for j in range(16):
        e("s_mov_b32 m0, s61"); e("s_nop 0")
        e(f"buffer_load_dwordx4 v{vtmp}, s[{srdW}:{srdW+3}], s60 offen lds")
        e("s_add_u32 s60, s60, 8192"); e("s_add_u32 s61, s61, 1024")

def gemm_w64(acc, vA, vB_getter, ta, tb):
    for i in range(16): e(f"v_mov_b32 v{acc+i}, 0")
    for k0 in range(0, 32, 4):
        for kk in range(k0, k0 + 4):
            a = ta + 4 * (kk - k0)
            e(f"ds_read_b64_tr_b16 v[{a}:{a+1}], v{vA} offset:{kk*2048}")
            e(f"ds_read_b64_tr_b16 v[{a+2}:{a+3}], v{vA} offset:{kk*2048+512}")
            vB_getter(kk, tb + 4 * (kk - k0), True)
        e("s_waitcnt lgkmcnt(0)")
        for kk in range(k0, k0 + 4):
            a = ta + 4 * (kk - k0)
            b = vB_getter(kk, tb + 4 * (kk - k0), False)
            e(f"v_mfma_f32_32x32x16_bf16 v[{acc}:{acc+15}], v[{a}:{a+3}], v[{b}:{b+3}], v[{acc}:{acc+15}]")

def addrA_w64(vA, s_wc_times64, t):
    e(f"v_lshrrev_b32 v{t}, 5, v1"); e(f"v_lshlrev_b32 v{vA}, 10, v{t}")
    e(f"v_bfe_u32 v{t}, v1, 2, 2"); e(f"v_lshl_add_u32 v{vA}, v{t}, 7, v{vA}")
    e(f"v_bfe_u32 v{t}, v1, 4, 1"); e(f"v_lshl_add_u32 v{vA}, v{t}, 5, v{vA}")
    e(f"v_and_b32 v{t}, 3, v1"); e(f"v_lshl_add_u32 v{vA}, v{t}, 3, v{vA}")
    e(f"v_add_u32 v{vA}, s{s_wc_times64}, v{vA}")
    e(f"v_add_u32 v{vA}, {WL}, v{vA}")

def k1():
    header("prep_kernel")
    e("s_cmp_ge_u32 s2, 256"); e("s_cbranch_scc1 K1_END")
    e("s_load_dwordx2 s[4:5], s[0:1], 0"); e("s_load_dwordx2 s[6:7], s[0:1], 8")
    e("s_load_dwordx4 s[8:11], s[0:1], 16"); e("s_load_dwordx2 s[12:13], s[0:1], 48")
    e("s_load_dwordx2 s[14:15], s[0:1], 96")
    e("s_and_b32 s20, s2, 31"); e("s_lshr_b32 s21, s2, 5")
    e("v_and_b32 v1, 63, v0"); e("v_lshrrev_b32 v2, 6, v0"); e("s_nop 0")
    e("v_readfirstlane_b32 s22, v2")
    e("s_waitcnt lgkmcnt(0)")
    srd(24, 4, 5, 0x200000); srd(28, 6, 7, 0x80000); srd(32, 8, 9, 0x4000); srd(44, 10, 11, 0x4000)
    srd(36, 14, 15, WS_BYTES); srd(40, 12, 13, 0x400)
    e("s_and_b32 s23, s22, 1"); e("s_lshr_b32 s19, s22, 1")
    e("s_cmp_lg_u32 s2, 0"); e("s_cbranch_scc1 K1_NOZ"); e("s_cmp_lg_u32 s22, 0"); e("s_cbranch_scc1 K1_NOZ")
    for i in range(4): e(f"v_mov_b32 v{4+i}, 0")
    e(f"v_lshlrev_b32 v2, 4, v1"); e(f"v_add_u32 v2, {YP}, v2")
    for i in range(4): e(f"buffer_store_dwordx4 v[4:7], v2, s[36:39], 0 offen offset:{i*1024}")
    lab("K1_NOZ")
    e("s_cmp_eq_u32 s21, 8"); e("s_cbranch_scc1 K1_STAGE_KV")
    stage_w64(28, 22, 21, 2)
    e("s_branch K1_STAGED")
    lab("K1_STAGE_KV")
    e("v_lshlrev_b32 v2, 4, v1")
    e("s_lshl_b32 s60, s22, 12"); e(f"s_add_u32 s61, s60, {WL}")
    for j in range(4):
        e("s_mov_b32 m0, s61"); e("s_nop 0")
        e("buffer_load_dwordx4 v2, s[32:35], s60 offen lds")
        e(f"s_add_u32 s62, s61, 16384"); e("s_mov_b32 m0, s62"); e("s_nop 0")
        e("buffer_load_dwordx4 v2, s[44:47], s60 offen lds")
        e("s_add_u32 s60, s60, 1024"); e("s_add_u32 s61, s61, 1024")
    lab("K1_STAGED")
    X = 64
    e("v_lshrrev_b32 v2, 2, v1"); e("s_lshl_b32 s60, s20, 6"); e("s_lshl_b32 s61, s22, 4"); e("s_add_u32 s60, s60, s61")
    e("v_add_u32 v3, s60, v2")
    e("v_and_b32 v4, 3, v1"); e("v_lshlrev_b32 v4, 4, v4")
    e("v_lshl_add_u32 v5, v3, 10, v4")
    for j in range(16):
        e(f"buffer_load_dwordx4 v[{X+4*j}:{X+4*j+3}], v5, s[24:27], 0 offen offset:{j*64}")
    WR = 128
    e("s_cmp_lg_u32 s21, 0"); e("s_cbranch_scc1 K1_NOWR")
    for j in range(16):
        e(f"buffer_load_dwordx4 v[{WR+4*j}:{WR+4*j+3}], v4, s[40:43], 0 offen offset:{j*64}")
    lab("K1_NOWR")
    e("s_waitcnt vmcnt(0)")
    e("v_mov_b32 v6, 0"); e("v_mov_b32 v7, 0"); e("v_mov_b32 v11, 0x3f803f80")
    for i in range(64):
        e(f"v_dot2_f32_bf16 v6, v{X+i}, v11, v6"); e(f"v_dot2_f32_bf16 v7, v{X+i}, v{X+i}, v7")
    def quadsum(v):
        e("s_nop 1"); e(f"v_add_f32_dpp v{v}, v{v}, v{v} quad_perm:[1,0,3,2] row_mask:0xf bank_mask:0xf")
        e("s_nop 1"); e(f"v_add_f32_dpp v{v}, v{v}, v{v} quad_perm:[2,3,0,1] row_mask:0xf bank_mask:0xf")
    e("s_nop 4"); quadsum(6); quadsum(7)
    e("v_mul_f32 v6, 0x3b000000, v6"); e("v_mul_f32 v7, 0x3b000000, v7")
    e("v_fma_f32 v7, -v6, v6, v7"); e("v_max_f32 v7, 0, v7")
    e("v_cvt_pk_bf16_f32 v8, v6, v7")
    e("v_lshlrev_b32 v6, 16, v8"); e("v_and_b32 v7, 0xffff0000, v8")
    e("v_add_f32 v7, 0x3727c5ac, v7")
    e("v_cvt_pk_bf16_f32 v7, v7, v7"); e("v_lshlrev_b32 v7, 16, v7")
    e("v_sqrt_f32 v7, v7"); e("s_nop 0")
    e("v_cvt_pk_bf16_f32 v7, v7, v7"); e("v_lshlrev_b32 v7, 16, v7")
    e("v_rcp_f32 v7, v7"); e("s_nop 0")
    e("v_mul_f32 v6, v6, v7"); e("v_sub_f32 v6, 0, v6")
    for i in range(64):
        e(f"v_lshlrev_b32 v8, 16, v{X+i}"); e(f"v_and_b32 v9, 0xffff0000, v{X+i}")
        e("v_fma_f32 v8, v8, v7, v6"); e("v_fma_f32 v9, v9, v7, v6")
        e(f"v_cvt_pk_bf16_f32 v{X+i}, v8, v9")
    e(f"v_sub_u32 v8, v3, s60"); e("s_lshl_b32 s62, s22, 4"); e("v_add_u32 v8, s62, v8")
    e(f"v_mul_u32_u24 v8, {XROW}, v8"); e("v_add_u32 v8, v8, v4")
    for j in range(16):
        e(f"ds_write_b128 v8, v[{X+4*j}:{X+4*j+3}] offset:{j*64}")
    e("s_cmp_lg_u32 s21, 0"); e("s_cbranch_scc1 K1_NOXN")
    for j in range(16):
        e(f"buffer_store_dwordx4 v[{X+4*j}:{X+4*j+3}], v5, s[36:39], 0 offen offset:{j*64}")
    e("v_mov_b32 v9, 0")
    for i in range(64): e(f"v_dot2_f32_bf16 v9, v{X+i}, v{WR+i}, v9")
    e("s_nop 4"); quadsum(9)
    e("v_cvt_pk_bf16_f32 v9, v9, v9"); e("v_lshlrev_b32 v9, 16, v9")
    e("v_lshlrev_b32 v10, 2, v3"); e(f"v_add_u32 v10, {R}, v10")
    e("v_and_b32 v11, 3, v1"); e("v_cmp_eq_u32 vcc, 0, v11"); e("s_and_saveexec_b64 s[62:63], vcc")
    e("buffer_store_dword v9, v10, s[36:39], 0 offen")
    e("s_mov_b64 exec, s[62:63]")
    lab("K1_NOXN")
    e("s_waitcnt vmcnt(0) lgkmcnt(0)"); e("s_barrier")
    ACC, TA, TB = 16, 32, 48
    e("v_and_b32 v8, 31, v1"); e("s_lshl_b32 s62, s23, 5"); e("v_add_u32 v8, s62, v8")
    e(f"v_mul_u32_u24 v9, {XROW}, v8"); e("v_lshrrev_b32 v10, 5, v1"); e("v_lshl_add_u32 v9, v10, 4, v9")
    e("s_lshl_b32 s63, s20, 6"); e("v_add_u32 v8, s63, v8")
    def vB(kk, t, issue):
        if issue: e(f"ds_read_b128 v[{t}:{t+3}], v9 offset:{kk*32}")
        return t
    e("s_cmp_eq_u32 s21, 8"); e("s_cbranch_scc1 K1_KV")
    e("s_lshl_b32 s62, s19, 6")
    addrA_w64(11, 62, 12)
    gemm_w64(ACC, 11, vB, TA, TB)
    e("s_nop 15"); e("s_nop 3")
    e("s_lshl_b32 s62, s21, 7"); e("s_lshl_b32 s63, s19, 6"); e("s_add_u32 s62, s62, s63")
    e("v_lshlrev_b32 v12, 10, v8"); e("v_lshl_add_u32 v12, v10, 3, v12"); e("v_add_u32 v12, s62, v12")
    e(f"v_add_u32 v12, {Q}, v12")
    e("s_mov_b32 s62, 0x3eb8aa3b")
    for i in range(16): e(f"v_mul_f32 v{ACC+i}, s62, v{ACC+i}")
    for g in range(4):
        e(f"v_cvt_pk_bf16_f32 v{TA+2*g}, v{ACC+4*g}, v{ACC+4*g+1}")
        e(f"v_cvt_pk_bf16_f32 v{TA+2*g+1}, v{ACC+4*g+2}, v{ACC+4*g+3}")
        e(f"buffer_store_dwordx2 v[{TA+2*g}:{TA+2*g+1}], v12, s[36:39], 0 offen offset:{g*16}")
    e("s_and_b32 s62, s20, 7"); e("s_cmp_lg_u32 s62, s21"); e("s_cbranch_scc1 K1_END")
    e("s_barrier")
    e("v_lshlrev_b32 v2, 4, v1")
    e("s_lshl_b32 s60, s22, 12"); e(f"s_add_u32 s61, s60, {WL}")
    for j in range(4):
        e("s_mov_b32 m0, s61"); e("s_nop 0")
        e("buffer_load_dwordx4 v2, s[32:35], s60 offen lds")
        e(f"s_add_u32 s62, s61, 16384"); e("s_mov_b32 m0, s62"); e("s_nop 0")
        e("buffer_load_dwordx4 v2, s[44:47], s60 offen lds")
        e("s_add_u32 s60, s60, 1024"); e("s_add_u32 s61, s61, 1024")
    e("s_waitcnt vmcnt(0)"); e("s_barrier")
    lab("K1_KV")
    e("s_cmp_lg_u32 s19, 0"); e("s_cbranch_scc1 K1_END")
    e("v_lshrrev_b32 v12, 5, v1"); e("v_lshlrev_b32 v11, 8, v12")
    e("v_bfe_u32 v12, v1, 2, 2"); e("v_lshl_add_u32 v11, v12, 5, v11")
    e("v_bfe_u32 v12, v1, 4, 1"); e("v_lshl_add_u32 v11, v12, 14, v11")
    e("v_and_b32 v12, 3, v1"); e("v_lshl_add_u32 v11, v12, 3, v11")
    e(f"v_add_u32 v11, {WL}, v11")
    for i in range(16): e(f"v_mov_b32 v{ACC+i}, 0")
    for k0 in range(0, 32, 4):
        for kk in range(k0, k0 + 4):
            a = TA + 4 * (kk - k0)
            e(f"ds_read_b64_tr_b16 v[{a}:{a+1}], v11 offset:{kk*512}")
            e(f"ds_read_b64_tr_b16 v[{a+2}:{a+3}], v11 offset:{kk*512+128}")
            vB(kk, TB + 4 * (kk - k0), True)
        e("s_waitcnt lgkmcnt(0)")
        for kk in range(k0, k0 + 4):
            a = TA + 4 * (kk - k0); b = TB + 4 * (kk - k0)
            e(f"v_mfma_f32_32x32x16_bf16 v[{ACC}:{ACC+15}], v[{a}:{a+3}], v[{b}:{b+3}], v[{ACC}:{ACC+15}]")
    e("s_nop 15"); e("s_nop 3")
    e("v_lshlrev_b32 v12, 5, v8"); e("v_lshl_add_u32 v12, v10, 3, v12"); e(f"v_add_u32 v12, {KB}, v12")
    for g in range(2):
        e(f"v_cvt_pk_bf16_f32 v{TA+2*g}, v{ACC+4*g}, v{ACC+4*g+1}")
        e(f"v_cvt_pk_bf16_f32 v{TA+2*g+1}, v{ACC+4*g+2}, v{ACC+4*g+3}")
        e(f"buffer_store_dwordx2 v[{TA+2*g}:{TA+2*g+1}], v12, s[36:39], 0 offen offset:{g*16}")
    e("v_lshrrev_b32 v12, 4, v8"); e("v_lshlrev_b32 v12, 9, v12")
    e("v_bfe_u32 v13, v8, 2, 1"); e("v_lshl_add_u32 v12, v13, 8, v12")
    e("v_bfe_u32 v13, v8, 3, 1"); e("v_lshl_add_u32 v12, v13, 3, v12")
    e("v_and_b32 v13, 3, v8"); e("v_lshl_add_u32 v12, v13, 1, v12")
    e("v_lshl_add_u32 v12, v10, 6, v12"); e(f"v_add_u32 v12, {VT}, v12")
    for g in range(2, 4):
        for i in range(4):
            e(f"v_cvt_pk_bf16_f32 v13, v{ACC+4*g+i}, v{ACC+4*g+i}")
            e(f"buffer_store_short v13, v12, s[36:39], 0 offen offset:{(8*(g-2)+i)*16}")
    lab("K1_END")
    e("s_endpgm")

def k3():
    header("out_kernel")
    e("s_cmp_ge_u32 s2, 256"); e("s_cbranch_scc1 K3_END")
    e("s_load_dwordx2 s[4:5], s[0:1], 0"); e("s_load_dwordx2 s[6:7], s[0:1], 32")
    e("s_load_dwordx2 s[8:9], s[0:1], 80"); e("s_load_dwordx2 s[14:15], s[0:1], 96")
    e("s_and_b32 s20, s2, 31"); e("s_lshr_b32 s21, s2, 5")
    e("v_and_b32 v1, 63, v0"); e("v_lshrrev_b32 v2, 6, v0"); e("s_nop 0")
    e("v_readfirstlane_b32 s22, v2")
    e("s_waitcnt lgkmcnt(0)")
    e(f"s_add_u32 s16, s14, {SEL}"); e("s_addc_u32 s17, s15, 0")
    e("s_load_dwordx4 s[48:51], s[16:17], 0")
    srd(24, 4, 5, 0x200000); srd(28, 6, 7, 0x80000); srd(32, 8, 9, 0x200000); srd(36, 14, 15, WS_BYTES)
    e("s_and_b32 s23, s22, 1"); e("s_lshr_b32 s19, s22, 1")
    stage_w64(28, 22, 21, 2)
    ACC, TA, BB = 16, 32, 64
    e("v_and_b32 v8, 31, v1"); e("s_lshl_b32 s62, s23, 5"); e("s_lshl_b32 s63, s20, 6"); e("s_add_u32 s62, s62, s63")
    e("v_add_u32 v8, s62, v8")
    e("v_lshrrev_b32 v10, 5, v1")
    e("v_lshlrev_b32 v9, 10, v8"); e("v_lshl_add_u32 v9, v10, 4, v9"); e(f"v_add_u32 v9, {O}, v9")
    for kk in range(32):
        e(f"buffer_load_dwordx4 v[{BB+4*kk}:{BB+4*kk+3}], v9, s[36:39], 0 offen offset:{kk*32}")
    e("s_lshl_b32 s62, s21, 7"); e("s_lshl_b32 s63, s19, 6"); e("s_add_u32 s62, s62, s63")
    e("v_lshlrev_b32 v12, 10, v8"); e("v_lshl_add_u32 v12, v10, 3, v12"); e("v_add_u32 v12, s62, v12")
    XX, XXN = 192, 200
    for g in range(4):
        e(f"buffer_load_dwordx2 v[{XX+2*g}:{XX+2*g+1}], v12, s[24:27], 0 offen offset:{g*16}")
        e(f"buffer_load_dwordx2 v[{XXN+2*g}:{XXN+2*g+1}], v12, s[36:39], 0 offen offset:{g*16}")
    e("s_lshl_b32 s62, s19, 6")
    addrA_w64(11, 62, 13)
    e("s_waitcnt vmcnt(0)"); e("s_barrier")
    gemm_w64(ACC, 11, lambda kk, t, issue: BB + 4 * kk, TA, 0)
    e("s_nop 15"); e("s_nop 3")
    UP = 208
    for g in range(4):
        for p in range(2):
            e(f"v_lshlrev_b32 v{UP+4*g+2*p}, 16, v{XXN+2*g+p}"); e(f"v_and_b32 v{UP+4*g+2*p+1}, 0xffff0000, v{XXN+2*g+p}")
    e("s_waitcnt lgkmcnt(0)")
    for j in range(2):
        e(f"v_cmp_eq_u32 vcc, s{48+j}, v8"); e("s_and_saveexec_b64 s[62:63], vcc"); e(f"s_cbranch_execz K3_NOMOE{j}")
        e("s_lshl_b32 s60, s21, 8"); e("s_lshl_b32 s61, s19, 7"); e("s_add_u32 s60, s60, s61")
        e(f"v_lshlrev_b32 v13, 4, v10"); e("v_add_u32 v13, s60, v13"); e(f"v_add_u32 v13, {YP + j*2048}, v13")
        for g_ in range(4):
            e(f"buffer_load_dwordx4 v[{TA+4*g_}:{TA+4*g_+3}], v13, s[36:39], 0 offen offset:{g_*32}")
        e("s_waitcnt vmcnt(0)")
        for i in range(16):
            e(f"v_cvt_pk_bf16_f32 v{TA+i}, v{TA+i}, v{TA+i}"); e(f"v_lshlrev_b32 v{TA+i}, 16, v{TA+i}")
            e(f"v_mul_f32 v{TA+i}, s{50+j}, v{TA+i}")
            e(f"v_cvt_pk_bf16_f32 v{TA+i}, v{TA+i}, v{TA+i}"); e(f"v_lshlrev_b32 v{TA+i}, 16, v{TA+i}")
            e(f"v_add_f32 v{UP+i}, v{UP+i}, v{TA+i}")
            e(f"v_cvt_pk_bf16_f32 v{UP+i}, v{UP+i}, v{UP+i}"); e(f"v_lshlrev_b32 v{UP+i}, 16, v{UP+i}")
        lab(f"K3_NOMOE{j}")
        e("s_mov_b64 exec, s[62:63]")
    for g in range(4):
        for p in range(2):
            a0, a1 = ACC + 4 * g + 2 * p, ACC + 4 * g + 2 * p + 1
            e(f"v_cvt_pk_bf16_f32 v13, v{a0}, v{a1}")
            e(f"v_lshlrev_b32 v{a0}, 16, v13"); e(f"v_and_b32 v{a1}, 0xffff0000, v13")
            e(f"v_lshlrev_b32 v13, 16, v{XX+2*g+p}"); e(f"v_add_f32 v{a0}, v{a0}, v13")
            e(f"v_and_b32 v13, 0xffff0000, v{XX+2*g+p}"); e(f"v_add_f32 v{a1}, v{a1}, v13")
            e(f"v_cvt_pk_bf16_f32 v13, v{a0}, v{a1}")
            e(f"v_lshlrev_b32 v{a0}, 16, v13"); e(f"v_and_b32 v{a1}, 0xffff0000, v13")
            e(f"v_add_f32 v{a0}, v{a0}, v{UP+4*g+2*p}"); e(f"v_add_f32 v{a1}, v{a1}, v{UP+4*g+2*p+1}")
            e(f"v_cvt_pk_bf16_f32 v{TA+2*g+p}, v{a0}, v{a1}")
        e(f"buffer_store_dwordx2 v[{TA+2*g}:{TA+2*g+1}], v12, s[32:35], 0 offen offset:{g*16}")
    lab("K3_END")
    e("s_endpgm")

from k2 import k2, K2_LDS, K2_VGPR
def main():
    k1(); k2(L, e, lab, srd, header); k3()
    body = "\n".join(L)
    top = open(f"cdna_kernels/{NAME}.s.ref").read().split("; Override launch")[0]
    out = top
    out += f"; @launch kernel=prep_kernel grid=(256,1,1) block=(256,1,1) lds={K1_LDS}\n"
    out += f"; @launch kernel=attn_kernel grid=({256+NMOE},1,1) block=(1024,1,1) lds={K2_LDS}\n"
    out += f"; @launch kernel=out_kernel grid=(256,1,1) block=(256,1,1) lds={K1_LDS}\n"
    out += '.amdgcn_target "amdgcn-amd-amdhsa--gfx950"\n.text\n' + body + "\n"
    out += kd("prep_kernel", 192) + "\n" + kd("attn_kernel", K2_VGPR) + "\n" + kd("out_kernel", 224) + "\n"
    open(f"cdna_kernels/{NAME}.s", "w").write(out)
main()
```

```python
XN, Q, KB, VT, R, O, YP, SEL = 0, 0x200000, 0x400000, 0x410000, 0x420000, 0x500000, 0x700000, 0x740000
WS_BYTES = 0x800000
NMOE = 43
K2_LDS = 135168
K2_VGPR = 128
import os
V=os.environ.get('K2V','')
def k2(L, e, lab, srd, header):
    header("attn_kernel")
    e(f"s_cmp_ge_u32 s2, {256+NMOE}"); e("s_cbranch_scc1 K2_END")
    e("s_load_dwordx2 s[14:15], s[0:1], 96")
    e("s_load_dwordx4 s[4:7], s[0:1], 56"); e("s_load_dwordx2 s[8:9], s[0:1], 72")
    e("v_and_b32 v1, 63, v0"); e("v_lshrrev_b32 v2, 6, v0"); e("s_nop 0")
    e("v_readfirstlane_b32 s22, v2")
    e("s_mov_b32 s64, 0x0000ffff"); e("s_mov_b32 s65, 0x0000ffff")
    e("s_waitcnt lgkmcnt(0)")
    srd(36, 14, 15, WS_BYTES)
    e(f"s_cmp_lt_u32 s2, {NMOE}"); e("s_cbranch_scc1 K2_MOE")
    e(f"s_sub_u32 s20, s2, {NMOE}")
    QF, KA, KBb, VA, VB, NEGM, SA, SB, P, OA, T = 4, 8, 12, 16, 24, 32, 48, 64, 80, 88, 104
    e("v_lshlrev_b32 v2, 4, v1")
    e("s_lshl_b32 s60, s20, 3"); e("s_and_b32 s67, s22, 7"); e("s_add_u32 s60, s60, s67"); e("s_lshr_b32 s68, s22, 3"); e("s_lshl_b32 s69, s68, 15")
    e("v_and_b32 v2, 31, v1"); e("v_lshrrev_b32 v3, 5, v1")
    e("v_lshlrev_b32 v120, 5, v2"); e("v_lshl_add_u32 v120, v3, 4, v120")
    e("s_lshl_b32 s61, s60, 10"); e(f"s_add_u32 s61, s61, {Q}")
    e(f"buffer_load_dwordx4 v[{QF}:{QF+3}], v120, s[36:39], s61 offen")
    e("v_lshlrev_b32 v124, 4, v1")
    e("s_lshr_b32 s71, s22, 2"); e("s_lshl_b32 s71, s71, 15"); e("s_and_b32 s70, s22, 3"); e("s_lshl_b32 s70, s70, 10"); e("s_add_u32 s71, s71, s70")
    e(f"s_add_u32 s70, s71, {KB}")
    for j in range(8):
        e("s_mov_b32 m0, s71"); e("s_nop 0")
        e("buffer_load_dwordx4 v124, s[36:39], s70 offen lds")
        e("s_add_u32 s70, s70, 4096"); e("s_add_u32 s71, s71, 4096")
    e("v_and_b32 v121, 15, v1"); e("v_lshlrev_b32 v121, 4, v121"); e("v_lshl_add_u32 v121, v3, 8, v121")
    e("v_add_u32 v121, 0x10000, v121")
    e("v_cmp_eq_u32 vcc, 16, v2"); e("v_mov_b32 v122, 0x3f803f80"); e("s_nop 1")
    e("v_cndmask_b32 v122, 0, v122, vcc")
    for i in range(16): e(f"v_mov_b32 v{VA+i}, v122")
    for i in range(16): e(f"v_mov_b32 v{OA+i}, 0")
    for i in range(16): e(f"v_mov_b32 v{NEGM+i}, 0")
    e("s_waitcnt vmcnt(0)"); e("s_barrier")
    e("v_add_u32 v120, s69, v120"); e("v_add_u32 v121, s69, v121")
    e(f"ds_read_b128 v[{KA}:{KA+3}], v120"); e(f"ds_read_b128 v[{KBb}:{KBb+3}], v120 offset:1024")
    e("s_mov_b64 exec, s[64:65]")
    e(f"ds_read_b128 v[{VA}:{VA+3}], v121"); e(f"ds_read_b128 v[{VA+4}:{VA+7}], v121 offset:512")
    e("s_mov_b64 exec, -1")
    e("s_waitcnt lgkmcnt(0)")
    e(f"v_mfma_f32_32x32x16_bf16 v[{SA}:{SA+15}], v[{KA}:{KA+3}], v[{QF}:{QF+3}], v[{NEGM}:{NEGM+15}]")
    e("s_nop 15"); e("s_nop 3")
    def maxtree(S, d):
        e(f"v_max3_f32 v{d}, v{S}, v{S+1}, v{S+2}")
        for i in range(3, 15, 2): e(f"v_max3_f32 v{d}, v{d}, v{S+i}, v{S+i+1}")
        e(f"v_max_f32 v{d}, v{d}, v{S+15}")
    def bothhalves(d, t):
        e(f"v_mov_b32 v{t}, v{d}"); e("s_nop 1"); e(f"v_permlane32_swap_b32 v{d}, v{t}"); e("s_nop 1")
        e(f"v_max_f32 v{d}, v{d}, v{t}")
    maxtree(SA, T); bothhalves(T, T + 1)
    for i in range(16): e(f"v_sub_f32 v{SA+i}, v{SA+i}, v{T}")
    for i in range(16): e(f"v_sub_f32 v{NEGM+i}, 0, v{T}")
    e("v_add_u32 v120, 2048, v120")
    e("v_add_u32 v121, 1024, v121")
    slow = []
    def it(tag, Sc, Sn, Kc, Kn, Vc, Vn, koff, voff, last=False):
        if not last:
            e("s_waitcnt lgkmcnt(2)")
            e(f"v_mfma_f32_32x32x16_bf16 v[{Sn}:{Sn+15}], v[{Kn}:{Kn+3}], v[{QF}:{QF+3}], v[{NEGM}:{NEGM+15}]")
            e(f"ds_read_b128 v[{Kc}:{Kc+3}], v120 offset:{koff}")
        if 'e' not in V:
            for i in range(16): e(f"v_exp_f32 v{Sc+i}, v{Sc+i}")
        e("s_nop 0")
        for i in range(8): e(f"v_cvt_pk_bf16_f32 v{P+i}, v{Sc+2*i}, v{Sc+2*i+1}")
        e("s_waitcnt lgkmcnt(1)" if not last else "s_waitcnt lgkmcnt(0)"); e("s_nop 0")
        e(f"v_mfma_f32_32x32x16_bf16 v[{OA}:{OA+15}], v[{Vc}:{Vc+3}], v[{P}:{P+3}], v[{OA}:{OA+15}]")
        e(f"v_mfma_f32_32x32x16_bf16 v[{OA}:{OA+15}], v[{Vc+4}:{Vc+7}], v[{P+4}:{P+7}], v[{OA}:{OA+15}]")
        if last: return
        e("s_mov_b64 exec, s[64:65]")
        e(f"ds_read_b128 v[{Vn}:{Vn+3}], v121 offset:{voff}"); e(f"ds_read_b128 v[{Vn+4}:{Vn+7}], v121 offset:{voff+512}")
        e("s_mov_b64 exec, -1")
        if 'm' not in V:
            maxtree(Sn, T)
            e(f"v_cmp_lt_f32 vcc, 0x42200000, v{T}"); e("s_nop 1")
            e(f"s_cbranch_vccnz K2_SLOW{tag}")
        lab(f"K2_BACK{tag}")
        slow.append((tag, Sn))
    e("s_mov_b32 s66, 0")
    lab("K2_LOOP")
    it("A", SA, SB, KA, KBb, VA, VB, 0, 0)
    it("B", SB, SA, KBb, KA, VB, VA, 1024, 1024)
    e("v_add_u32 v120, 2048, v120"); e("v_add_u32 v121, 2048, v121")
    e("s_add_u32 s66, s66, 1")
    e("s_cmp_lt_u32 s66, 15"); e("s_cbranch_scc1 K2_LOOP")
    it("C", SA, SB, KA, KBb, VA, VB, 0, 0)
    it("D", SB, SA, KBb, KA, VB, VA, 0, 0, last=True)
    e("s_nop 15"); e("s_nop 3")
    e("s_barrier")
    e("s_lshl_b32 s67, s67, 13"); e("v_lshlrev_b32 v123, 4, v1"); e("v_add_u32 v123, s67, v123")
    e("s_cmp_eq_u32 s68, 0"); e("s_cbranch_scc1 K2_LOWER")
    for i in range(4): e(f"ds_write_b128 v123, v[{OA+4*i}:{OA+4*i+3}] offset:{i*1024}")
    e(f"ds_write_b32 v123, v{NEGM} offset:4096")
    e("s_waitcnt lgkmcnt(0)"); e("s_barrier"); e("s_endpgm")
    lab("K2_LOWER")
    e("s_barrier")
    for i in range(4): e(f"ds_read_b128 v[{SA+4*i}:{SA+4*i+3}], v123 offset:{i*1024}")
    e(f"ds_read_b32 v{T}, v123 offset:4096"); e("s_waitcnt lgkmcnt(0)")
    e(f"v_min_f32 v{T+1}, v{T}, v{NEGM}")
    e(f"v_sub_f32 v{T}, v{T+1}, v{T}"); e(f"v_sub_f32 v{T+1}, v{T+1}, v{NEGM}")
    e(f"v_exp_f32 v{T}, v{T}"); e(f"v_exp_f32 v{T+1}, v{T+1}"); e("s_nop 0")
    for i in range(16):
        e(f"v_mul_f32 v{OA+i}, v{OA+i}, v{T+1}"); e(f"v_fmac_f32 v{OA+i}, v{SA+i}, v{T}")
    e(f"v_mov_b32 v{T}, v{OA+8}"); e(f"v_mov_b32 v{T+1}, v{OA+8}"); e("s_nop 1")
    e(f"v_permlane32_swap_b32 v{T}, v{T+1}"); e("s_nop 1")
    e(f"v_rcp_f32 v{T}, v{T}"); e("s_nop 0")
    for i in range(8): e(f"v_mul_f32 v{OA+i}, v{OA+i}, v{T}")
    for i in range(4): e(f"v_cvt_pk_bf16_f32 v{P+i}, v{OA+2*i}, v{OA+2*i+1}")
    e("v_lshlrev_b32 v2, 5, v2"); e("v_lshl_add_u32 v2, v3, 3, v2")
    e("s_lshl_b32 s61, s60, 10"); e(f"s_add_u32 s61, s61, {O}")
    e(f"buffer_store_dwordx2 v[{P}:{P+1}], v2, s[36:39], s61 offen")
    e(f"buffer_store_dwordx2 v[{P+2}:{P+3}], v2, s[36:39], s61 offen offset:16")
    e("s_endpgm")
    for tag, Sn in slow:
        lab(f"K2_SLOW{tag}")
        e("s_nop 15"); e("s_nop 15")
        bothhalves(T, T + 1)
        e(f"v_max_f32 v{T}, 0, v{T}")
        for i in range(16): e(f"v_sub_f32 v{Sn+i}, v{Sn+i}, v{T}")
        for i in range(16): e(f"v_sub_f32 v{NEGM+i}, v{NEGM+i}, v{T}")
        e(f"v_sub_f32 v{T}, 0, v{T}"); e(f"v_exp_f32 v{T}, v{T}"); e("s_nop 0")
        for i in range(16): e(f"v_mul_f32 v{OA+i}, v{OA+i}, v{T}")
        e("s_nop 3")
        e(f"s_branch K2_BACK{tag}")
    lab("K2_MOE")
    if 'x' in V: e("s_endpgm")
    e("s_cmp_lt_u32 s22, 8"); e("s_cbranch_scc1 K2_MOE_GO")
    e("s_barrier"); e("s_barrier"); e("s_barrier"); e("s_barrier"); e("s_endpgm")
    lab("K2_MOE_GO")
    srd(24, 4, 5, 512 * 2752); srd(28, 6, 7, 512 * 2752); srd(32, 8, 9, 1376 * 1024)
    e("v_lshrrev_b32 v2, 2, v1"); e("v_mul_u32_u24 v2, 2752, v2"); e("v_and_b32 v3, 3, v1"); e("v_lshl_add_u32 v2, v3, 4, v2")
    e("v_lshlrev_b32 v3, 4, v1")
    e("s_lshl_b32 s60, s2, 6")
    e(f"s_mul_i32 s61, s22, {4*16*2752}"); e("s_add_u32 s60, s60, s61")
    e("s_lshl_b32 s61, s22, 12")
    e("s_lshl_b32 s62, s2, 15"); e("s_add_u32 s62, s62, s61")
    for j in range(4):
        e("s_mov_b32 m0, s61"); e("s_nop 0"); e("buffer_load_dwordx4 v2, s[24:27], s60 offen lds")
        e("s_add_u32 s63, s61, 32768"); e("s_mov_b32 m0, s63"); e("s_nop 0"); e("buffer_load_dwordx4 v2, s[28:31], s60 offen lds")
        e("s_add_u32 s63, s61, 65536"); e("s_mov_b32 m0, s63"); e("s_nop 0"); e("buffer_load_dwordx4 v3, s[32:35], s62 offen lds")
        e(f"s_add_u32 s60, s60, {16*2752}"); e("s_add_u32 s61, s61, 1024"); e("s_add_u32 s62, s62, 1024")
    RV = 8
    e(f"v_add_u32 v4, {R}, v3")
    e("s_movk_i32 s47, 4096")
    for i in range(8): e(f"buffer_load_dwordx4 v[{RV+4*i}:{RV+4*i+3}], v4, s[36:39], {'s47' if i>=4 else '0'} offen offset:{(i%4)*1024}")
    e("v_mov_b32 v5, 0"); e("v_mov_b32 v6, 0")
    e("v_lshlrev_b32 v7, 2, v1"); e("v_sub_u32 v7, 2047, v7")
    e("s_waitcnt vmcnt(0)")
    for i in range(32):
        v = RV + i
        e(f"v_ashrrev_i32 v40, 31, v{v}"); e(f"v_or_b32 v40, 0x80000000, v40"); e(f"v_xor_b32 v40, v40, v{v}")
        e("v_and_b32 v40, 0xffff0000, v40")
        e(f"v_sub_u32 v41, v7, {(i//4)*256 + (i%4)}" if False else f"v_subrev_u32 v41, {(i//4)*256 + (i%4)}, v7")
        e("v_or_b32 v40, v40, v41")
        e("v_min_u32 v41, v5, v40"); e("v_max_u32 v6, v6, v41"); e("v_max_u32 v5, v5, v40")
    def wavemax(v, t):
        e(f"v_mov_b32 v{t}, v{v}")
        for m in ["quad_perm:[1,0,3,2]", "quad_perm:[2,3,0,1]", "row_half_mirror", "row_mirror"]:
            e("s_nop 1"); e(f"v_max_u32_dpp v{t}, v{t}, v{t} {m} row_mask:0xf bank_mask:0xf")
        e(f"ds_swizzle_b32 v{t+1}, v{t} offset:0x401F"); e("s_waitcnt lgkmcnt(0)"); e(f"v_max_u32 v{t}, v{t}, v{t+1}")
        e(f"v_mov_b32 v{t+1}, v{t}"); e("s_nop 1"); e(f"v_permlane32_swap_b32 v{t}, v{t+1}"); e("s_nop 1")
        e(f"v_max_u32 v{t}, v{t}, v{t+1}")
    wavemax(5, 42)
    e("v_cmp_eq_u32 vcc, v5, v42"); e("s_nop 1"); e("v_cndmask_b32 v5, v5, v6, vcc")
    wavemax(5, 44)
    e("s_nop 1"); e("v_readfirstlane_b32 s40, v42"); e("v_readfirstlane_b32 s41, v44"); e("s_nop 3")
    e("s_and_b32 s42, s40, 0x7ff"); e("s_sub_u32 s42, 2047, s42")
    e("s_and_b32 s43, s41, 0x7ff"); e("s_sub_u32 s43, 2047, s43")
    for j in range(2):
        e(f"s_and_b32 s44, s{40+j}, 0xffff0000"); e("v_mov_b32 v40, s44")
        e("v_ashrrev_i32 v41, 31, v40"); e("v_not_b32 v41, v41"); e("v_or_b32 v41, 0x80000000, v41")
        e("v_xor_b32 v40, v40, v41"); e("v_and_b32 v40, 0xffff0000, v40")
        e("v_mul_f32 v40, 0xbfb8aa3b, v40"); e("v_exp_f32 v40, v40"); e("s_nop 0"); e("v_add_f32 v40, 1.0, v40")
        e("v_rcp_f32 v40, v40"); e("s_nop 0"); e("v_cvt_pk_bf16_f32 v40, v40, v40"); e(f"v_lshlrev_b32 v{46+j}, 16, v40")
    e("s_cmp_lg_u32 s2, 0"); e("s_cbranch_scc1 K2_NOSEL"); e("s_cmp_lg_u32 s22, 0"); e("s_cbranch_scc1 K2_NOSEL")
    e("v_mov_b32 v44, s42"); e("v_mov_b32 v45, s43"); e(f"v_mov_b32 v40, {SEL}")
    e("v_cmp_eq_u32 vcc, 0, v1"); e("s_and_saveexec_b64 s[62:63], vcc")
    e("buffer_store_dwordx4 v[44:47], v40, s[36:39], 0 offen"); e("s_mov_b64 exec, s[62:63]")
    lab("K2_NOSEL")
    e("s_cmp_ge_u32 s22, 4"); e("s_cbranch_scc1 K2_MOE_W2")
    XB, ACC, TA = 48, 8, 24
    e("s_and_b32 s44, s22, 1"); e("s_lshr_b32 s45, s22, 1")
    for i in range(64): e(f"v_mov_b32 v{XB+i}, 0")
    e("v_and_b32 v2, 31, v1"); e("v_lshrrev_b32 v3, 5, v1")
    e("v_mov_b32 v4, s42"); e("v_mov_b32 v5, s43"); e("v_cmp_eq_u32 vcc, 1, v2"); e("s_nop 1"); e("v_cndmask_b32 v4, v4, v5, vcc")
    e("v_lshlrev_b32 v4, 10, v4"); e("v_lshl_add_u32 v4, v3, 4, v4"); e("s_lshl_b32 s46, s45, 9"); e("v_add_u32 v4, s46, v4")
    e("v_cmp_gt_u32 vcc, 2, v2"); e("s_and_saveexec_b64 s[62:63], vcc")
    for kk in range(16): e(f"buffer_load_dwordx4 v[{XB+4*kk}:{XB+4*kk+3}], v4, s[36:39], 0 offen offset:{kk*32}")
    e("s_mov_b64 exec, s[62:63]")
    e("v_lshlrev_b32 v6, 9, v3"); e("v_bfe_u32 v7, v1, 2, 2"); e("v_lshl_add_u32 v6, v7, 6, v6")
    e("v_bfe_u32 v7, v1, 4, 1"); e("v_lshl_add_u32 v6, v7, 5, v6"); e("v_and_b32 v7, 3, v1"); e("v_lshl_add_u32 v6, v7, 3, v6")
    e("s_lshl_b32 s46, s44, 15"); e("s_lshl_b32 s47, s45, 14"); e("s_add_u32 s46, s46, s47"); e("v_add_u32 v6, s46, v6")
    for i in range(16): e(f"v_mov_b32 v{ACC+i}, 0")
    e("s_waitcnt vmcnt(0)"); e("s_barrier")
    for k0 in range(0, 16, 4):
        for kk in range(k0, k0 + 4):
            a = TA + 4 * (kk - k0)
            e(f"ds_read_b64_tr_b16 v[{a}:{a+1}], v6 offset:{kk*1024}"); e(f"ds_read_b64_tr_b16 v[{a+2}:{a+3}], v6 offset:{kk*1024+256}")
        e("s_waitcnt lgkmcnt(0)")
        for kk in range(k0, k0 + 4):
            a = TA + 4 * (kk - k0)
            e(f"v_mfma_f32_32x32x16_bf16 v[{ACC}:{ACC+15}], v[{a}:{a+3}], v[{XB+4*kk}:{XB+4*kk+3}], v[{ACC}:{ACC+15}]")
    e("s_nop 15"); e("s_nop 3")
    e("s_lshl_b32 s46, s22, 8"); e("v_lshlrev_b32 v7, 5, v3"); e("v_lshl_add_u32 v7, v2, 2, v7"); e("v_add_u32 v7, s46, v7")
    e("v_add_u32 v7, 98304, v7")
    e("v_cmp_gt_u32 vcc, 2, v2"); e("s_and_saveexec_b64 s[62:63], vcc")
    for r in range(16): e(f"ds_write_b32 v7, v{ACC+r} offset:{(8*(r//4)+(r%4))*8}")
    e("s_mov_b64 exec, s[62:63]")
    e("s_waitcnt lgkmcnt(0)"); e("s_barrier")
    e("s_branch K2_MOE_H")
    lab("K2_MOE_W2")
    e("s_waitcnt vmcnt(0)"); e("s_barrier"); e("s_barrier")
    lab("K2_MOE_H")
    e("v_and_b32 v2, 31, v1"); e("v_lshrrev_b32 v3, 5, v1")
    e("v_lshlrev_b32 v7, 3, v2"); e("v_lshl_add_u32 v7, v3, 2, v7"); e("v_add_u32 v7, 98304, v7")
    e("ds_read_b32 v8, v7"); e("ds_read_b32 v9, v7 offset:512"); e("ds_read_b32 v10, v7 offset:256"); e("ds_read_b32 v11, v7 offset:768")
    e("s_waitcnt lgkmcnt(0)")
    e("v_add_f32 v8, v8, v9"); e("v_add_f32 v10, v10, v11")
    e("v_cvt_pk_bf16_f32 v8, v8, v10"); e("v_lshlrev_b32 v9, 16, v8"); e("v_and_b32 v10, 0xffff0000, v8")
    e("v_mul_f32 v11, 0xbfb8aa3b, v9"); e("v_exp_f32 v11, v11"); e("s_nop 0"); e("v_add_f32 v11, 1.0, v11"); e("v_rcp_f32 v11, v11"); e("s_nop 0")
    e("v_mul_f32 v9, v9, v11"); e("v_cvt_pk_bf16_f32 v9, v9, v9"); e("v_lshlrev_b32 v9, 16, v9")
    e("v_mul_f32 v9, v9, v10"); e("v_cvt_pk_bf16_f32 v9, v9, v9")
    e("v_lshlrev_b32 v7, 1, v2"); e("v_lshl_add_u32 v7, v3, 6, v7"); e("v_add_u32 v7, 99328, v7")
    e("s_cmp_lg_u32 s22, 0"); e("s_cbranch_scc1 K2_MOE_NOH")
    e("ds_write_b16 v7, v9"); e("s_waitcnt lgkmcnt(0)")
    lab("K2_MOE_NOH")
    e("s_barrier")
    HBv = 40
    for i in range(8): e(f"v_mov_b32 v{HBv+i}, 0")
    e("v_lshlrev_b32 v7, 6, v2"); e("v_lshl_add_u32 v7, v3, 4, v7"); e("v_add_u32 v7, 99328, v7")
    e("v_cmp_gt_u32 vcc, 2, v2"); e("s_and_saveexec_b64 s[62:63], vcc")
    e(f"ds_read_b128 v[{HBv}:{HBv+3}], v7"); e(f"ds_read_b128 v[{HBv+4}:{HBv+7}], v7 offset:32")
    e("s_mov_b64 exec, s[62:63]")
    e("v_lshlrev_b32 v6, 13, v3"); e("v_bfe_u32 v8, v1, 2, 2"); e("v_lshl_add_u32 v6, v8, 10, v6")
    e("v_bfe_u32 v8, v1, 4, 1"); e("v_lshl_add_u32 v6, v8, 5, v6"); e("v_and_b32 v8, 3, v1"); e("v_lshl_add_u32 v6, v8, 3, v6")
    e("s_lshl_b32 s46, s22, 7"); e("v_add_u32 v6, s46, v6"); e("v_add_u32 v6, 65536, v6")
    e("s_lshl_b32 s47, s22, 8"); e(f"s_add_u32 s46, s47, {YP}")
    e("v_lshlrev_b32 v5, 11, v2"); e("v_lshl_add_u32 v5, v3, 4, v5")
    for tl in range(2):
        for i in range(16): e(f"v_mov_b32 v{ACC+i}, 0")
        for kk in range(2):
            e(f"ds_read_b64_tr_b16 v[{TA+4*kk}:{TA+4*kk+1}], v6 offset:{kk*16384+tl*64}")
            e(f"ds_read_b64_tr_b16 v[{TA+4*kk+2}:{TA+4*kk+3}], v6 offset:{kk*16384+4096+tl*64}")
        e("s_waitcnt lgkmcnt(0)")
        for kk in range(2):
            e(f"v_mfma_f32_32x32x16_bf16 v[{ACC}:{ACC+15}], v[{TA+4*kk}:{TA+4*kk+3}], v[{HBv+4*kk}:{HBv+4*kk+3}], v[{ACC}:{ACC+15}]")
        e("s_nop 15"); e("s_nop 3")
        e("v_cmp_gt_u32 vcc, 2, v2"); e("s_and_saveexec_b64 s[62:63], vcc")
        e("v_add_u32 v4, s47, v5"); e("v_add_u32 v4, 100352, v4")
        for g in range(4): e(f"ds_write_b128 v4, v[{ACC+4*g}:{ACC+4*g+3}] offset:{tl*128+g*32}")
        e("s_mov_b64 exec, s[62:63]")
    e("s_waitcnt lgkmcnt(0)"); e("s_barrier")
    e("v_lshlrev_b32 v4, 2, v0"); e("v_add_u32 v5, 100352, v4")
    e("ds_read_b32 v6, v5"); e("ds_read_b32 v7, v5 offset:2048"); e("s_waitcnt lgkmcnt(0)")
    e(f"v_add_u32 v4, {YP}, v4")
    e("buffer_atomic_add_f32 v6, v4, s[36:39], 0 offen"); e("buffer_atomic_add_f32 v7, v4, s[36:39], 0 offen offset:2048")
    lab("K2_END")
    e("s_endpgm")
```

```python
XN, Q, KB, VT, R, O, YP, SEL = 0, 0x200000, 0x400000, 0x410000, 0x420000, 0x500000, 0x700000, 0x740000
WS_BYTES = 0x800000
NMOE = 43
K2_LDS = 135168
K2_VGPR = 128
import os
V=os.environ.get('K2V','')
def k2(L, e, lab, srd, header):
    header("attn_kernel")
    e(f"s_cmp_ge_u32 s2, {256+NMOE}"); e("s_cbranch_scc1 K2_END")
    e("s_load_dwordx2 s[14:15], s[0:1], 96")
    e("s_load_dwordx4 s[4:7], s[0:1], 56"); e("s_load_dwordx2 s[8:9], s[0:1], 72")
    e("v_and_b32 v1, 63, v0"); e("v_lshrrev_b32 v2, 6, v0"); e("s_nop 0")
    e("v_readfirstlane_b32 s22, v2")
    e("s_mov_b32 s64, 0x0000ffff"); e("s_mov_b32 s65, 0x0000ffff")
    e("s_waitcnt lgkmcnt(0)")
    srd(36, 14, 15, WS_BYTES)
    e(f"s_cmp_lt_u32 s2, {NMOE}"); e("s_cbranch_scc1 K2_MOE")
    e(f"s_sub_u32 s20, s2, {NMOE}")
    QF, KA, KBb, VA, VB, NEGM, SA, SB, P, OA, T = 4, 8, 12, 16, 24, 32, 48, 64, 80, 88, 104
    e("v_lshlrev_b32 v2, 4, v1")
    e("s_lshl_b32 s60, s20, 3"); e("s_and_b32 s67, s22, 7"); e("s_add_u32 s60, s60, s67"); e("s_lshr_b32 s68, s22, 3"); e("s_lshl_b32 s69, s68, 15")
    e("v_and_b32 v2, 31, v1"); e("v_lshrrev_b32 v3, 5, v1")
    e("v_lshlrev_b32 v120, 5, v2"); e("v_lshl_add_u32 v120, v3, 4, v120")
    e("s_lshl_b32 s61, s60, 10"); e(f"s_add_u32 s61, s61, {Q}")
    e(f"buffer_load_dwordx4 v[{QF}:{QF+3}], v120, s[36:39], s61 offen")
    e("v_lshlrev_b32 v124, 4, v1")
    e("s_lshr_b32 s71, s22, 2"); e("s_lshl_b32 s71, s71, 15"); e("s_and_b32 s70, s22, 3"); e("s_lshl_b32 s70, s70, 10"); e("s_add_u32 s71, s71, s70")
    e(f"s_add_u32 s70, s71, {KB}")
    for j in range(8):
        e("s_mov_b32 m0, s71"); e("s_nop 0")
        e("buffer_load_dwordx4 v124, s[36:39], s70 offen lds")
        e("s_add_u32 s70, s70, 4096"); e("s_add_u32 s71, s71, 4096")
    e("v_and_b32 v121, 15, v1"); e("v_lshlrev_b32 v121, 4, v121"); e("v_lshl_add_u32 v121, v3, 8, v121")
    e("v_add_u32 v121, 0x10000, v121")
    e("v_cmp_eq_u32 vcc, 16, v2"); e("v_mov_b32 v122, 0x3f803f80"); e("s_nop 1")
    e("v_cndmask_b32 v122, 0, v122, vcc")
    for i in range(16): e(f"v_mov_b32 v{VA+i}, v122")
    for i in range(16): e(f"v_mov_b32 v{OA+i}, 0")
    for i in range(16): e(f"v_mov_b32 v{NEGM+i}, 0")
    e("s_waitcnt vmcnt(6)"); e("s_barrier")
    e("v_add_u32 v120, s69, v120"); e("v_add_u32 v121, s69, v121")
    e(f"ds_read_b128 v[{KA}:{KA+3}], v120"); e(f"ds_read_b128 v[{KBb}:{KBb+3}], v120 offset:1024")
    e("s_mov_b64 exec, s[64:65]")
    e(f"ds_read_b128 v[{VA}:{VA+3}], v121"); e(f"ds_read_b128 v[{VA+4}:{VA+7}], v121 offset:512")
    e("s_mov_b64 exec, -1")
    e("s_waitcnt lgkmcnt(0)")
    e(f"v_mfma_f32_32x32x16_bf16 v[{SA}:{SA+15}], v[{KA}:{KA+3}], v[{QF}:{QF+3}], v[{NEGM}:{NEGM+15}]")
    e("s_nop 15"); e("s_nop 3")
    def maxtree(S, d):
        e(f"v_max3_f32 v{d}, v{S}, v{S+1}, v{S+2}")
        for i in range(3, 15, 2): e(f"v_max3_f32 v{d}, v{d}, v{S+i}, v{S+i+1}")
        e(f"v_max_f32 v{d}, v{d}, v{S+15}")
    def bothhalves(d, t):
        e(f"v_mov_b32 v{t}, v{d}"); e("s_nop 1"); e(f"v_permlane32_swap_b32 v{d}, v{t}"); e("s_nop 1")
        e(f"v_max_f32 v{d}, v{d}, v{t}")
    maxtree(SA, T); bothhalves(T, T + 1)
    for i in range(16): e(f"v_sub_f32 v{SA+i}, v{SA+i}, v{T}")
    for i in range(16): e(f"v_sub_f32 v{NEGM+i}, 0, v{T}")
    e("v_add_u32 v120, 2048, v120")
    e("v_add_u32 v121, 1024, v121")
    slow = []
    def it(tag, Sc, Sn, Kc, Kn, Vc, Vn, koff, voff, last=False):
        if not last:
            e("s_waitcnt lgkmcnt(2)")
            e(f"v_mfma_f32_32x32x16_bf16 v[{Sn}:{Sn+15}], v[{Kn}:{Kn+3}], v[{QF}:{QF+3}], v[{NEGM}:{NEGM+15}]")
            e(f"ds_read_b128 v[{Kc}:{Kc+3}], v120 offset:{koff}")
        if 'e' not in V:
            for i in range(16): e(f"v_exp_f32 v{Sc+i}, v{Sc+i}")
        e("s_nop 0")
        for i in range(8): e(f"v_cvt_pk_bf16_f32 v{P+i}, v{Sc+2*i}, v{Sc+2*i+1}")
        e("s_waitcnt lgkmcnt(1)" if not last else "s_waitcnt lgkmcnt(0)"); e("s_nop 0")
        e(f"v_mfma_f32_32x32x16_bf16 v[{OA}:{OA+15}], v[{Vc}:{Vc+3}], v[{P}:{P+3}], v[{OA}:{OA+15}]")
        e(f"v_mfma_f32_32x32x16_bf16 v[{OA}:{OA+15}], v[{Vc+4}:{Vc+7}], v[{P+4}:{P+7}], v[{OA}:{OA+15}]")
        if last: return
        e("s_mov_b64 exec, s[64:65]")
        e(f"ds_read_b128 v[{Vn}:{Vn+3}], v121 offset:{voff}"); e(f"ds_read_b128 v[{Vn+4}:{Vn+7}], v121 offset:{voff+512}")
        e("s_mov_b64 exec, -1")
        if 'm' not in V:
            maxtree(Sn, T)
            e(f"v_cmp_lt_f32 vcc, 0x42200000, v{T}"); e("s_nop 1")
            e(f"s_cbranch_vccnz K2_SLOW{tag}")
        lab(f"K2_BACK{tag}")
        slow.append((tag, Sn))
    e("s_mov_b32 s66, 0")
    lab("K2_LOOP")
    it("A", SA, SB, KA, KBb, VA, VB, 0, 0)
    it("B", SB, SA, KBb, KA, VB, VA, 1024, 1024)
    e("v_add_u32 v120, 2048, v120"); e("v_add_u32 v121, 2048, v121")
    e("s_add_u32 s66, s66, 1")
    e("s_bitcmp1_b32 s66, 0"); e("s_cbranch_scc1 K2_NOPH")
    for p in range(1, 7):
        e(f"s_cmp_eq_u32 s66, {2*p}"); e(f"s_cbranch_scc0 K2_PH{p}"); e(f"s_waitcnt vmcnt({6-p})"); e("s_barrier"); lab(f"K2_PH{p}")
    lab("K2_NOPH")
    e("s_cmp_lt_u32 s66, 15"); e("s_cbranch_scc1 K2_LOOP")
    it("C", SA, SB, KA, KBb, VA, VB, 0, 0)
    it("D", SB, SA, KBb, KA, VB, VA, 0, 0, last=True)
    e("s_nop 15"); e("s_nop 3")
    e("s_barrier")
    e("s_lshl_b32 s67, s67, 13"); e("v_lshlrev_b32 v123, 4, v1"); e("v_add_u32 v123, s67, v123")
    e("s_cmp_eq_u32 s68, 0"); e("s_cbranch_scc1 K2_LOWER")
    for i in range(4): e(f"ds_write_b128 v123, v[{OA+4*i}:{OA+4*i+3}] offset:{i*1024}")
    e(f"ds_write_b32 v123, v{NEGM} offset:4096")
    e("s_waitcnt lgkmcnt(0)"); e("s_barrier"); e("s_endpgm")
    lab("K2_LOWER")
    e("s_barrier")
    for i in range(4): e(f"ds_read_b128 v[{SA+4*i}:{SA+4*i+3}], v123 offset:{i*1024}")
    e(f"ds_read_b32 v{T}, v123 offset:4096"); e("s_waitcnt lgkmcnt(0)")
    e(f"v_min_f32 v{T+1}, v{T}, v{NEGM}")
    e(f"v_sub_f32 v{T}, v{T+1}, v{T}"); e(f"v_sub_f32 v{T+1}, v{T+1}, v{NEGM}")
    e(f"v_exp_f32 v{T}, v{T}"); e(f"v_exp_f32 v{T+1}, v{T+1}"); e("s_nop 0")
    for i in range(16):
        e(f"v_mul_f32 v{OA+i}, v{OA+i}, v{T+1}"); e(f"v_fmac_f32 v{OA+i}, v{SA+i}, v{T}")
    e(f"v_mov_b32 v{T}, v{OA+8}"); e(f"v_mov_b32 v{T+1}, v{OA+8}"); e("s_nop 1")
    e(f"v_permlane32_swap_b32 v{T}, v{T+1}"); e("s_nop 1")
    e(f"v_rcp_f32 v{T}, v{T}"); e("s_nop 0")
    for i in range(8): e(f"v_mul_f32 v{OA+i}, v{OA+i}, v{T}")
    for i in range(4): e(f"v_cvt_pk_bf16_f32 v{P+i}, v{OA+2*i}, v{OA+2*i+1}")
    e("v_lshlrev_b32 v2, 5, v2"); e("v_lshl_add_u32 v2, v3, 3, v2")
    e("s_lshl_b32 s61, s60, 10"); e(f"s_add_u32 s61, s61, {O}")
    e(f"buffer_store_dwordx2 v[{P}:{P+1}], v2, s[36:39], s61 offen")
    e(f"buffer_store_dwordx2 v[{P+2}:{P+3}], v2, s[36:39], s61 offen offset:16")
    e("s_endpgm")
    for tag, Sn in slow:
        lab(f"K2_SLOW{tag}")
        e("s_nop 15"); e("s_nop 15")
        bothhalves(T, T + 1)
        e(f"v_max_f32 v{T}, 0, v{T}")
        for i in range(16): e(f"v_sub_f32 v{Sn+i}, v{Sn+i}, v{T}")
        for i in range(16): e(f"v_sub_f32 v{NEGM+i}, v{NEGM+i}, v{T}")
        e(f"v_sub_f32 v{T}, 0, v{T}"); e(f"v_exp_f32 v{T}, v{T}"); e("s_nop 0")
        for i in range(16): e(f"v_mul_f32 v{OA+i}, v{OA+i}, v{T}")
        e("s_nop 3")
        e(f"s_branch K2_BACK{tag}")
    lab("K2_MOE")
    if 'x' in V: e("s_endpgm")
    e("s_cmp_lt_u32 s22, 8"); e("s_cbranch_scc1 K2_MOE_GO")
    e("s_barrier"); e("s_barrier"); e("s_barrier"); e("s_barrier"); e("s_endpgm")
    lab("K2_MOE_GO")
    srd(24, 4, 5, 512 * 2752); srd(28, 6, 7, 512 * 2752); srd(32, 8, 9, 1376 * 1024)
    e("v_lshrrev_b32 v2, 2, v1"); e("v_mul_u32_u24 v2, 2752, v2"); e("v_and_b32 v3, 3, v1"); e("v_lshl_add_u32 v2, v3, 4, v2")
    e("v_lshlrev_b32 v3, 4, v1")
    e("s_lshl_b32 s60, s2, 6")
    e(f"s_mul_i32 s61, s22, {4*16*2752}"); e("s_add_u32 s60, s60, s61")
    e("s_lshl_b32 s61, s22, 12")
    e("s_lshl_b32 s62, s2, 15"); e("s_add_u32 s62, s62, s61")
    for j in range(4):
        e("s_mov_b32 m0, s61"); e("s_nop 0"); e("buffer_load_dwordx4 v2, s[24:27], s60 offen lds")
        e("s_add_u32 s63, s61, 32768"); e("s_mov_b32 m0, s63"); e("s_nop 0"); e("buffer_load_dwordx4 v2, s[28:31], s60 offen lds")
        e("s_add_u32 s63, s61, 65536"); e("s_mov_b32 m0, s63"); e("s_nop 0"); e("buffer_load_dwordx4 v3, s[32:35], s62 offen lds")
        e(f"s_add_u32 s60, s60, {16*2752}"); e("s_add_u32 s61, s61, 1024"); e("s_add_u32 s62, s62, 1024")
    RV = 8
    e(f"v_add_u32 v4, {R}, v3")
    e("s_movk_i32 s47, 4096")
    for i in range(8): e(f"buffer_load_dwordx4 v[{RV+4*i}:{RV+4*i+3}], v4, s[36:39], {'s47' if i>=4 else '0'} offen offset:{(i%4)*1024}")
    e("v_mov_b32 v5, 0"); e("v_mov_b32 v6, 0")
    e("v_lshlrev_b32 v7, 2, v1"); e("v_sub_u32 v7, 2047, v7")
    e("s_waitcnt vmcnt(0)")
    for i in range(32):
        v = RV + i
        e(f"v_ashrrev_i32 v40, 31, v{v}"); e(f"v_or_b32 v40, 0x80000000, v40"); e(f"v_xor_b32 v40, v40, v{v}")
        e("v_and_b32 v40, 0xffff0000, v40")
        e(f"v_sub_u32 v41, v7, {(i//4)*256 + (i%4)}" if False else f"v_subrev_u32 v41, {(i//4)*256 + (i%4)}, v7")
        e("v_or_b32 v40, v40, v41")
        e("v_min_u32 v41, v5, v40"); e("v_max_u32 v6, v6, v41"); e("v_max_u32 v5, v5, v40")
    def wavemax(v, t):
        e(f"v_mov_b32 v{t}, v{v}")
        for m in ["quad_perm:[1,0,3,2]", "quad_perm:[2,3,0,1]", "row_half_mirror", "row_mirror"]:
            e("s_nop 1"); e(f"v_max_u32_dpp v{t}, v{t}, v{t} {m} row_mask:0xf bank_mask:0xf")
        e(f"ds_swizzle_b32 v{t+1}, v{t} offset:0x401F"); e("s_waitcnt lgkmcnt(0)"); e(f"v_max_u32 v{t}, v{t}, v{t+1}")
        e(f"v_mov_b32 v{t+1}, v{t}"); e("s_nop 1"); e(f"v_permlane32_swap_b32 v{t}, v{t+1}"); e("s_nop 1")
        e(f"v_max_u32 v{t}, v{t}, v{t+1}")
    wavemax(5, 42)
    e("v_cmp_eq_u32 vcc, v5, v42"); e("s_nop 1"); e("v_cndmask_b32 v5, v5, v6, vcc")
    wavemax(5, 44)
    e("s_nop 1"); e("v_readfirstlane_b32 s40, v42"); e("v_readfirstlane_b32 s41, v44"); e("s_nop 3")
    e("s_and_b32 s42, s40, 0x7ff"); e("s_sub_u32 s42, 2047, s42")
    e("s_and_b32 s43, s41, 0x7ff"); e("s_sub_u32 s43, 2047, s43")
    for j in range(2):
        e(f"s_and_b32 s44, s{40+j}, 0xffff0000"); e("v_mov_b32 v40, s44")
        e("v_ashrrev_i32 v41, 31, v40"); e("v_not_b32 v41, v41"); e("v_or_b32 v41, 0x80000000, v41")
        e("v_xor_b32 v40, v40, v41"); e("v_and_b32 v40, 0xffff0000, v40")
        e("v_mul_f32 v40, 0xbfb8aa3b, v40"); e("v_exp_f32 v40, v40"); e("s_nop 0"); e("v_add_f32 v40, 1.0, v40")
        e("v_rcp_f32 v40, v40"); e("s_nop 0"); e("v_cvt_pk_bf16_f32 v40, v40, v40"); e(f"v_lshlrev_b32 v{46+j}, 16, v40")
    e("s_cmp_lg_u32 s2, 0"); e("s_cbranch_scc1 K2_NOSEL"); e("s_cmp_lg_u32 s22, 0"); e("s_cbranch_scc1 K2_NOSEL")
    e("v_mov_b32 v44, s42"); e("v_mov_b32 v45, s43"); e(f"v_mov_b32 v40, {SEL}")
    e("v_cmp_eq_u32 vcc, 0, v1"); e("s_and_saveexec_b64 s[62:63], vcc")
    e("buffer_store_dwordx4 v[44:47], v40, s[36:39], 0 offen"); e("s_mov_b64 exec, s[62:63]")
    lab("K2_NOSEL")
    e("s_cmp_ge_u32 s22, 4"); e("s_cbranch_scc1 K2_MOE_W2")
    XB, ACC, TA = 48, 8, 24
    e("s_and_b32 s44, s22, 1"); e("s_lshr_b32 s45, s22, 1")
    for i in range(64): e(f"v_mov_b32 v{XB+i}, 0")
    e("v_and_b32 v2, 31, v1"); e("v_lshrrev_b32 v3, 5, v1")
    e("v_mov_b32 v4, s42"); e("v_mov_b32 v5, s43"); e("v_cmp_eq_u32 vcc, 1, v2"); e("s_nop 1"); e("v_cndmask_b32 v4, v4, v5, vcc")
    e("v_lshlrev_b32 v4, 10, v4"); e("v_lshl_add_u32 v4, v3, 4, v4"); e("s_lshl_b32 s46, s45, 9"); e("v_add_u32 v4, s46, v4")
    e("v_cmp_gt_u32 vcc, 2, v2"); e("s_and_saveexec_b64 s[62:63], vcc")
    for kk in range(16): e(f"buffer_load_dwordx4 v[{XB+4*kk}:{XB+4*kk+3}], v4, s[36:39], 0 offen offset:{kk*32}")
    e("s_mov_b64 exec, s[62:63]")
    e("v_lshlrev_b32 v6, 9, v3"); e("v_bfe_u32 v7, v1, 2, 2"); e("v_lshl_add_u32 v6, v7, 6, v6")
    e("v_bfe_u32 v7, v1, 4, 1"); e("v_lshl_add_u32 v6, v7, 5, v6"); e("v_and_b32 v7, 3, v1"); e("v_lshl_add_u32 v6, v7, 3, v6")
    e("s_lshl_b32 s46, s44, 15"); e("s_lshl_b32 s47, s45, 14"); e("s_add_u32 s46, s46, s47"); e("v_add_u32 v6, s46, v6")
    for i in range(16): e(f"v_mov_b32 v{ACC+i}, 0")
    e("s_waitcnt vmcnt(0)"); e("s_barrier")
    for k0 in range(0, 16, 4):
        for kk in range(k0, k0 + 4):
            a = TA + 4 * (kk - k0)
            e(f"ds_read_b64_tr_b16 v[{a}:{a+1}], v6 offset:{kk*1024}"); e(f"ds_read_b64_tr_b16 v[{a+2}:{a+3}], v6 offset:{kk*1024+256}")
        e("s_waitcnt lgkmcnt(0)")
        for kk in range(k0, k0 + 4):
            a = TA + 4 * (kk - k0)
            e(f"v_mfma_f32_32x32x16_bf16 v[{ACC}:{ACC+15}], v[{a}:{a+3}], v[{XB+4*kk}:{XB+4*kk+3}], v[{ACC}:{ACC+15}]")
    e("s_nop 15"); e("s_nop 3")
    e("s_lshl_b32 s46, s22, 8"); e("v_lshlrev_b32 v7, 5, v3"); e("v_lshl_add_u32 v7, v2, 2, v7"); e("v_add_u32 v7, s46, v7")
    e("v_add_u32 v7, 98304, v7")
    e("v_cmp_gt_u32 vcc, 2, v2"); e("s_and_saveexec_b64 s[62:63], vcc")
    for r in range(16): e(f"ds_write_b32 v7, v{ACC+r} offset:{(8*(r//4)+(r%4))*8}")
    e("s_mov_b64 exec, s[62:63]")
    e("s_waitcnt lgkmcnt(0)"); e("s_barrier")
    e("s_branch K2_MOE_H")
    lab("K2_MOE_W2")
    e("s_waitcnt vmcnt(0)"); e("s_barrier"); e("s_barrier")
    lab("K2_MOE_H")
    e("v_and_b32 v2, 31, v1"); e("v_lshrrev_b32 v3, 5, v1")
    e("v_lshlrev_b32 v7, 3, v2"); e("v_lshl_add_u32 v7, v3, 2, v7"); e("v_add_u32 v7, 98304, v7")
    e("ds_read_b32 v8, v7"); e("ds_read_b32 v9, v7 offset:512"); e("ds_read_b32 v10, v7 offset:256"); e("ds_read_b32 v11, v7 offset:768")
    e("s_waitcnt lgkmcnt(0)")
    e("v_add_f32 v8, v8, v9"); e("v_add_f32 v10, v10, v11")
    e("v_cvt_pk_bf16_f32 v8, v8, v10"); e("v_lshlrev_b32 v9, 16, v8"); e("v_and_b32 v10, 0xffff0000, v8")
    e("v_mul_f32 v11, 0xbfb8aa3b, v9"); e("v_exp_f32 v11, v11"); e("s_nop 0"); e("v_add_f32 v11, 1.0, v11"); e("v_rcp_f32 v11, v11"); e("s_nop 0")
    e("v_mul_f32 v9, v9, v11"); e("v_cvt_pk_bf16_f32 v9, v9, v9"); e("v_lshlrev_b32 v9, 16, v9")
    e("v_mul_f32 v9, v9, v10"); e("v_cvt_pk_bf16_f32 v9, v9, v9")
    e("v_lshlrev_b32 v7, 1, v2"); e("v_lshl_add_u32 v7, v3, 6, v7"); e("v_add_u32 v7, 99328, v7")
    e("s_cmp_lg_u32 s22, 0"); e("s_cbranch_scc1 K2_MOE_NOH")
    e("ds_write_b16 v7, v9"); e("s_waitcnt lgkmcnt(0)")
    lab("K2_MOE_NOH")
    e("s_barrier")
    HBv = 40
    for i in range(8): e(f"v_mov_b32 v{HBv+i}, 0")
    e("v_lshlrev_b32 v7, 6, v2"); e("v_lshl_add_u32 v7, v3, 4, v7"); e("v_add_u32 v7, 99328, v7")
    e("v_cmp_gt_u32 vcc, 2, v2"); e("s_and_saveexec_b64 s[62:63], vcc")
    e(f"ds_read_b128 v[{HBv}:{HBv+3}], v7"); e(f"ds_read_b128 v[{HBv+4}:{HBv+7}], v7 offset:32")
    e("s_mov_b64 exec, s[62:63]")
    e("v_lshlrev_b32 v6, 13, v3"); e("v_bfe_u32 v8, v1, 2, 2"); e("v_lshl_add_u32 v6, v8, 10, v6")
    e("v_bfe_u32 v8, v1, 4, 1"); e("v_lshl_add_u32 v6, v8, 5, v6"); e("v_and_b32 v8, 3, v1"); e("v_lshl_add_u32 v6, v8, 3, v6")
    e("s_lshl_b32 s46, s22, 7"); e("v_add_u32 v6, s46, v6"); e("v_add_u32 v6, 65536, v6")
    e("s_lshl_b32 s47, s22, 8"); e(f"s_add_u32 s46, s47, {YP}")
    e("v_lshlrev_b32 v5, 11, v2"); e("v_lshl_add_u32 v5, v3, 4, v5")
    for tl in range(2):
        for i in range(16): e(f"v_mov_b32 v{ACC+i}, 0")
        for kk in range(2):
            e(f"ds_read_b64_tr_b16 v[{TA+4*kk}:{TA+4*kk+1}], v6 offset:{kk*16384+tl*64}")
            e(f"ds_read_b64_tr_b16 v[{TA+4*kk+2}:{TA+4*kk+3}], v6 offset:{kk*16384+4096+tl*64}")
        e("s_waitcnt lgkmcnt(0)")
        for kk in range(2):
            e(f"v_mfma_f32_32x32x16_bf16 v[{ACC}:{ACC+15}], v[{TA+4*kk}:{TA+4*kk+3}], v[{HBv+4*kk}:{HBv+4*kk+3}], v[{ACC}:{ACC+15}]")
        e("s_nop 15"); e("s_nop 3")
        e("v_cmp_gt_u32 vcc, 2, v2"); e("s_and_saveexec_b64 s[62:63], vcc")
        e("v_add_u32 v4, s47, v5"); e("v_add_u32 v4, 100352, v4")
        for g in range(4): e(f"ds_write_b128 v4, v[{ACC+4*g}:{ACC+4*g+3}] offset:{tl*128+g*32}")
        e("s_mov_b64 exec, s[62:63]")
    e("s_waitcnt lgkmcnt(0)"); e("s_barrier")
    e("v_lshlrev_b32 v4, 2, v0"); e("v_add_u32 v5, 100352, v4")
    e("ds_read_b32 v6, v5"); e("ds_read_b32 v7, v5 offset:2048"); e("s_waitcnt lgkmcnt(0)")
    e(f"v_add_u32 v4, {YP}, v4")
    e("buffer_atomic_add_f32 v6, v4, s[36:39], 0 offen"); e("buffer_atomic_add_f32 v7, v4, s[36:39], 0 offen offset:2048")
    lab("K2_END")
    e("s_endpgm")
```
